```python
import torch

def _softmax(x, axis=-1):
    return torch.softmax(x, dim=axis)
def _gelu(x):
    return torch.nn.functional.gelu(x, approximate="tanh")
def _silu(x):
    return torch.nn.functional.silu(x)
def _sigmoid(x):
    return torch.sigmoid(x)
def _layernorm(x, axis=-1, eps=1e-5):
    m = x.mean(dim=axis, keepdim=True)
    v = x.var(dim=axis, keepdim=True, unbiased=False)
    return (x - m) / torch.sqrt(v + eps)
def _scatter_add(tgt, idx, src, axis=0):
    return tgt.clone().index_add_(axis, idx, src)
def _segment_sum(src, seg, n):
    out = torch.zeros((n,) + src.shape[1:], dtype=src.dtype)
    return out.index_add_(0, seg, src)
def _pad(x, pw):
    flat = tuple(v for pair in reversed(pw) for v in pair)
    return torch.nn.functional.pad(x, flat)

kernel_name = 'concat_heads__ssm_conv_s4__ssm_conv_h3__prompt'

def setup_inputs():

    _w = (lambda a: (lambda t: t.to(torch.bfloat16) if t.is_floating_point() else t)(torch.as_tensor(a)))
    def _A_setup():
        B, L, D, N = 1, 2048, 1024, 128
        A_re = -(lambda _x: torch.exp(torch.as_tensor(_x)))((lambda *s: torch.randn(*s, dtype=torch.bfloat16) * 3.2)(D, N))
        A_im = torch.pi * (lambda *s: torch.randn(*s, dtype=torch.bfloat16) * 0.05)(D, N)
        B_re = (lambda *s: torch.randn(*s, dtype=torch.bfloat16) * 0.1)(D, N)
        B_im = (lambda *s: torch.randn(*s, dtype=torch.bfloat16) * 0.1)(D, N)
        C_re = (lambda *s: torch.randn(*s, dtype=torch.bfloat16) * 0.1)(D, N)
        C_im = (lambda *s: torch.randn(*s, dtype=torch.bfloat16) * 0.1)(D, N)
        log_dt = (lambda *s: torch.randn(*s, dtype=torch.bfloat16) * 0.05)(D) * 0.5 - 4.0
        Dskip = (lambda *s: torch.randn(*s, dtype=torch.bfloat16) * 0.05)(D)
        return {
            "u": _w((lambda *s: torch.randn(*s, dtype=torch.bfloat16) * 0.05)(B, L, D)),
            "A_re": _w(A_re),
            "A_im": _w(A_im),
            "B_re": _w(B_re),
            "B_im": _w(B_im),
            "C_re": _w(C_re),
            "C_im": _w(C_im),
            "log_dt": _w(log_dt),
            "Dskip": _w(Dskip),
        }
    _A_in = _A_setup()

    def _B_setup():
        B, S, D = 1, 2048, 1024
        ks = 4
        return {
            "q": _w((lambda *s: torch.randn(*s, dtype=torch.bfloat16) * 0.05)(B, S, D)),
            "k": _w((lambda *s: torch.randn(*s, dtype=torch.bfloat16) * 0.2)(B, S, D)),
            "v": _w((lambda *s: torch.randn(*s, dtype=torch.bfloat16) * 0.2)(B, S, D)),
            "shift_k": _w((lambda *s: torch.randn(*s, dtype=torch.bfloat16) * 0.2)(D, ks) * 0.5),
            "ssm_k": _w((lambda *s: torch.randn(*s, dtype=torch.bfloat16) * 0.8)(D, S) * (1.0 / S ** 0.5)),
            "ssm_D": _w((lambda *s: torch.randn(*s, dtype=torch.bfloat16) * 0.2)(D)),
        }
    _B_in = _B_setup()

    return {
        "A_u": _A_in["u"],
        "A_A_re": _A_in["A_re"],
        "A_A_im": _A_in["A_im"],
        "A_B_re": _A_in["B_re"],
        "A_B_im": _A_in["B_im"],
        "A_C_re": _A_in["C_re"],
        "A_C_im": _A_in["C_im"],
        "A_log_dt": _A_in["log_dt"],
        "A_Dskip": _A_in["Dskip"],
        "B_q": _B_in["q"],
        "B_k": _B_in["k"],
        "B_v": _B_in["v"],
        "B_shift_k": _B_in["shift_k"],
        "B_ssm_k": _B_in["ssm_k"],
        "B_ssm_D": _B_in["ssm_D"],
    }

def reference(A_u, A_A_re, A_A_im, A_B_re, A_B_im, A_C_re, A_C_im, A_log_dt, A_Dskip, B_q, B_k, B_v, B_shift_k, B_ssm_k, B_ssm_D):
    def _A_ref(u, A_re, A_im, B_re, B_im, C_re, C_im, log_dt, Dskip):
        Bsz, L, D = u.shape
        dt = torch.exp(log_dt)[:, None]
        A = A_re + 1j * A_im
        Bc = B_re + 1j * B_im
        Cc = C_re + 1j * C_im
        logdA = dt * A
        dB = dt * Bc
        l = (lambda x, dt: x.to(dt))(torch.arange(L), A_re.dtype)
        P = torch.exp(logdA[:, :, None] * l[None, None, :])
        K = torch.einsum("dn,dnl,dn->dl", Cc, P, dB).real
        L2 = 2 * L
        Kp = _pad(K, ((0, 0), (0, L)))
        up = (lambda x, *d: x.permute(*d))(u, 0, 2, 1)
        up = _pad(up, ((0, 0), (0, 0), (0, L)))
        Kf = (lambda x, axes=(-2,-1): torch.fft.rfft2(x.float(), dim=axes))(Kp[:, None, :], axes=(-2, -1))
        Uf = (lambda x, axes=(-2,-1): torch.fft.rfft2(x.float(), dim=axes))(up[:, :, None, :], axes=(-2, -1))
        Yf = Uf * Kf[None, :, :, :]
        y = (lambda x, s, axes=(-2,-1): torch.fft.irfft2(x, s=s, dim=axes).to(torch.bfloat16))(Yf, (1, L2), axes=(-2, -1))[:, :, 0, :L]
        y = (lambda x, *d: x.permute(*d))(y, 0, 2, 1) + u * Dskip[None, None, :]
        return y

    def _B_ref(q, k, v, shift_k, ssm_k, ssm_D):
        B, S, D = q.shape
        ks = shift_k.shape[-1]
        k_pad = _pad(k, ((0, 0), (ks - 1, 0), (0, 0)))
        k_shift = torch.zeros_like(k)
        for t in range(ks):
            k_shift = k_shift + k_pad[:, t:t + S, :] * shift_k[:, ks - 1 - t][None, None, :]
        kv = k_shift * v
        L = 2 * S
        kv_pad = _pad(kv, ((0, 0), (0, S), (0, 0)))
        kf_pad = _pad(ssm_k, ((0, 0), (0, S)))
        kv_f = (lambda x, axes=(-2,-1): torch.fft.rfft2(x.float(), dim=axes))(kv_pad[:, None, :, :], axes=(1, 2))
        kf_f = (lambda x, axes=(-2,-1): torch.fft.rfft2(x.float(), dim=axes))(kf_pad[:, None, :], axes=(1, 2))
        kf_f = (lambda x, *d: x.permute(*d))(kf_f, 1, 2, 0)
        y_f = kv_f * kf_f[None, :, :, :]
        y = (lambda x, s, axes=(-2,-1): torch.fft.irfft2(x, s=s, dim=axes).to(torch.bfloat16))(y_f, (1, L), axes=(1, 2))[:, 0, :S, :]
        y = y + kv * ssm_D[None, None, :]
        return q * y

    a = _A_ref(A_u, A_A_re, A_A_im, A_B_re, A_B_im, A_C_re, A_C_im, A_log_dt, A_Dskip)
    b = _B_ref(B_q, B_k, B_v, B_shift_k, B_ssm_k, B_ssm_D)
    return torch.concatenate([a, b], axis=-1)
```

```python
import re

REG_RE = re.compile(r'\b([vsa])(?:(\d+)|\[(\d+):(\d+)\])')

def regs_in(tok):
    out = []
    for m in REG_RE.finditer(tok):
        k = m.group(1)
        if m.group(2) is not None:
            out.append((k, int(m.group(2))))
        else:
            out += [(k, i) for i in range(int(m.group(3)), int(m.group(4)) + 1)]
    if re.search(r'\bvcc\b', tok): out += [('s', 106), ('s', 107)]
    if 'vcc_lo' in tok: out += [('s', 106)]
    if 'vcc_hi' in tok: out += [('s', 107)]
    if re.search(r'\bm0\b', tok): out += [('s', 124)]
    if re.search(r'\bexec\b', tok): out += [('s', 126), ('s', 127)]
    return out

def split_ops(s):
    ops, depth, cur = [], 0, ''
    for ch in s:
        if ch == '[': depth += 1
        if ch == ']': depth -= 1
        if ch == ',' and depth == 0:
            ops.append(cur.strip()); cur = ''
        else:
            cur += ch
    if cur.strip(): ops.append(cur.strip())
    return ops

TRANS = ('v_exp_f32', 'v_log_f32', 'v_rcp_f32', 'v_rsq_f32', 'v_sqrt_f32', 'v_sin_f32', 'v_cos_f32')

class Ins:
    __slots__ = ('text', 'mn', 'kind', 'rd', 'wr', 'dpp', 'srcC', 'tag', 'lds_dma')
    def __init__(self, text, tag=None):
        self.text = text.strip()
        self.tag = tag
        body = self.text.split(';')[0].strip()
        parts = body.split(None, 1)
        mn = parts[0]
        self.mn = mn
        rest = parts[1] if len(parts) > 1 else ''
        ops = split_ops(rest)
        self.dpp = ('_dpp' in mn) or (' row_' in body) or ('wave_sh' in body) or ('quad_perm' in body)
        self.srcC = []
        self.lds_dma = False
        rd, wr = [], []
        if mn.endswith(':') or mn.startswith('.'):
            self.kind = 'label'
        elif mn.startswith('v_mfma'):
            self.kind = 'mfma'
            wr = regs_in(ops[0]); rd = regs_in(ops[1]) + regs_in(ops[2]); self.srcC = regs_in(ops[3])
        elif mn.startswith('ds_'):
            if mn.startswith('ds_write'):
                self.kind = 'dsw'
                for o in ops: rd += regs_in(o)
            else:
                self.kind = 'dsr'
                wr = regs_in(ops[0])
                for o in ops[1:]: rd += regs_in(o)
        elif mn.startswith('buffer_') or mn.startswith('global_'):
            if 'store' in mn or 'wbl2' in mn:
                self.kind = 'vst'
                for o in ops: rd += regs_in(o)
            elif re.search(r'\blds\b', body) or '_lds_' in mn:
                self.kind = 'vld'; self.lds_dma = True
                for o in ops: rd += regs_in(o)
                rd.append(('s', 124))
            else:
                self.kind = 'vld'
                wr = regs_in(ops[0])
                for o in ops[1:]: rd += regs_in(o)
        elif mn.startswith('s_load') or mn.startswith('s_memtime') or mn.startswith('s_memrealtime'):
            self.kind = 'smem'
            wr = regs_in(ops[0])
            for o in ops[1:]: rd += regs_in(o)
        elif mn in ('s_waitcnt', 's_nop', 's_barrier', 's_endpgm', 's_setprio', 's_sleep') or mn.startswith('s_cbranch') or mn == 's_branch':
            self.kind = 'ctl'
        elif mn.startswith('s_cmp'):
            self.kind = 'salu'
            for o in ops: rd += regs_in(o)
        elif mn.startswith('s_'):
            self.kind = 'salu'
            wr = regs_in(ops[0])
            for o in ops[1:]: rd += regs_in(o)
            if 'saveexec' in mn: wr += [('s', 126), ('s', 127)]
        elif mn.startswith('v_'):
            self.kind = 'valu'
            wr = regs_in(ops[0])
            for o in ops[1:]: rd += regs_in(o)
            base = mn.replace('_e32', '').replace('_e64', '').replace('_dpp', '')
            if base.startswith('v_fmac') or base.startswith('v_dot2c') or self.dpp or base.startswith('v_writelane'):
                rd += wr
            if base in ('v_add_co_u32', 'v_sub_co_u32', 'v_addc_co_u32'):
                wr += regs_in(ops[1])
            if base.startswith('v_permlane'):
                wr += regs_in(ops[1]); rd += regs_in(ops[0])
        else:
            raise ValueError('unknown instruction: ' + text)
        self.rd = set(rd); self.wr = set(wr)
    @property
    def trans(self):
        return self.mn.replace('_e32', '').replace('_e64', '') in TRANS


class Asm:
    def __init__(self):
        self.out = []
        self.vm = []
        self.lg = []
        self.smem = False
        self.smem_regs = set()
        self.hist = []
        self.nbytes = 0
        self.stats = {}

    def raw(self, text):
        self.out.append(text)

    def _emit(self, ins, states=1):
        self.out.append('    ' + ins.text)
        self.hist.append((ins, states))
        if len(self.hist) > 24: self.hist.pop(0)
        self.stats[ins.kind] = self.stats.get(ins.kind, 0) + 1

    def wait(self, vm=None, lg=None):
        parts = []
        if vm is not None and len(self.vm) > vm:
            assert vm <= 63
            parts.append('vmcnt(%d)' % vm); self.vm = self.vm[len(self.vm) - vm:] if vm else []
        if lg is not None and (len(self.lg) > lg or (self.smem and lg == 0)):
            if self.smem: lg = 0
            lg = min(lg, 14)
            parts.append('lgkmcnt(%d)' % lg); self.lg = self.lg[len(self.lg) - lg:] if lg else []
            if lg == 0: self.smem = False; self.smem_regs = set()
        if parts:
            self._emit(Ins('s_waitcnt ' + ' '.join(parts)))

    def wait_tag(self, tag):
        vm = lg = None
        for i, (r, t) in enumerate(self.vm):
            if t == tag: vm = len(self.vm) - 1 - i
        for i, (r, t) in enumerate(self.lg):
            if t == tag: lg = len(self.lg) - 1 - i
        self.wait(vm, lg)

    def _need_states(self, ins):
        need = 0
        dist = 0
        touched = ins.rd | ins.wr | set(ins.srcC)
        for prev, st in reversed(self.hist):
            req = 0
            if prev.kind == 'valu':
                vw = {r for r in prev.wr if r[0] in 'va'}
                sw = {r for r in prev.wr if r[0] == 's'}
                if ins.kind == 'mfma' and vw & (ins.rd | set(ins.srcC)): req = max(req, 2)
                if ins.kind == 'valu':
                    if prev.trans and not ins.trans and vw & ins.rd: req = max(req, 1)
                    if prev.trans and ins.trans and vw & ins.rd: req = max(req, 1)
                    if ins.dpp and vw & ins.rd: req = max(req, 2)
                    if ins.mn.startswith('v_readlane') or ins.mn.startswith('v_readfirstlane'):
                        if vw & ins.rd: req = max(req, 1)
                        if sw & ins.rd: req = max(req, 4)
                    if ins.mn.startswith('v_permlane') and vw & ins.rd: req = max(req, 2)
                    if sw & ins.rd: req = max(req, 2)
                    if ('op_sel' in prev.text or 'sdwa' in prev.mn) and not prev.mn.startswith('v_pk') and vw & ins.rd: req = max(req, 1)
                if ins.kind in ('vld', 'vst') and sw & ins.rd: req = max(req, 5)
                if ins.kind in ('salu', 'smem') and sw & ins.rd: req = max(req, 1)
                if prev.trans and ins.kind in ('dsw', 'vst', 'dsr', 'vld') and vw & ins.rd: req = max(req, 1)
            elif prev.kind == 'mfma':
                d = prev.wr
                if ins.kind == 'mfma':
                    if d & ins.rd: req = max(req, 8)
                    c = set(ins.srcC)
                    if d & c and d != c: req = max(req, 6)
                    if d & ins.wr and d != ins.wr: req = max(req, 6)
                    if d & ins.wr and d == ins.wr and c != d: req = max(req, 8)
                elif ins.kind in ('valu', 'dsr', 'dsw', 'vld', 'vst'):
                    if d & touched: req = max(req, 8)
                    if ins.kind == 'valu' and set(prev.srcC) & ins.wr: req = max(req, 3)
            elif prev.kind == 'salu':
                if ('s', 124) in prev.wr and (ins.lds_dma or 'addtid' in ins.mn): req = max(req, 1)
            elif prev.kind == 'vst':
                if ('x4' in prev.mn or 'x3' in prev.mn) and ins.kind in ('valu', 'dsr', 'vld', 'mfma') and (prev.rd & ins.wr):
                    req = max(req, 2)
            if req > dist: need = max(need, req - dist)
            dist += st
            if dist >= 12: break
        return need

    def add(self, ins):
        if isinstance(ins, str): ins = Ins(ins)
        if ins.kind == 'label':
            self.out.append(ins.text); return
        touched = ins.rd | ins.wr | set(ins.srcC)
        vm = lg = None
        for i, (r, t) in enumerate(self.vm):
            if r & touched: vm = len(self.vm) - 1 - i
        for i, (r, t) in enumerate(self.lg):
            if r & touched: lg = len(self.lg) - 1 - i
        if self.smem and (self.smem_regs & touched): lg = 0
        if ins.kind in ('vld', 'vst') and len(self.vm) >= 62:
            vm = 61 if vm is None else min(vm, 61)
        self.wait(vm, lg)
        n = self._need_states(ins)
        while n > 0:
            k = min(n, 16)
            self._emit(Ins('s_nop %d' % (k - 1)), k); n -= k
        if ins.mn == 's_nop':
            self._emit(ins, int(ins.text.split()[1], 0) + 1)
        else:
            self._emit(ins)
        if ins.kind == 'vld': self.vm.append((set(ins.wr), ins.tag))
        elif ins.kind == 'vst': self.vm.append((set(), ins.tag))
        elif ins.kind == 'dsr': self.lg.append((set(ins.wr), ins.tag))
        elif ins.kind == 'dsw': self.lg.append((set(), ins.tag))
        elif ins.kind == 'smem':
            self.smem = True; self.smem_regs |= ins.wr

    def run(self, items):
        for it in items:
            if callable(it): it(self)
            else: self.add(it)

    def text(self):
        return '\n'.join(self.out) + '\n'


def WAIT(vm=None, lg=None):
    return lambda a: a.wait(vm, lg)
def WAITTAG(tag):
    return lambda a: a.wait_tag(tag)
def BARRIER():
    def f(a):
        idx = None
        for i, (r, t) in enumerate(a.lg):
            if not r: idx = len(a.lg) - 1 - i
        if idx is not None: a.wait(None, idx)
        a.add('s_barrier')
    return f

class GAP:
    def __init__(self, n): self.n = n

def interleave(main, side, rate=2, start=0):
    out = []
    side = list(side)
    cnt = 0
    gap = 0
    for it in main:
        out.append(it)
        if isinstance(it, Ins) and it.kind == 'mfma':
            cnt += 1
            if cnt <= start: continue
            if gap > 0:
                gap -= 1; continue
            budget = rate
            while side and budget > 0:
                s = side[0]
                if isinstance(s, GAP):
                    side.pop(0); gap = s.n; break
                side.pop(0)
                out.append(s)
                if isinstance(s, Ins):
                    budget -= (2 if s.trans else 1) if s.kind == 'valu' else 0.5
    rest = [s for s in side if not isinstance(s, GAP)]
    return out, rest
```

```python
import sys, struct
from asmlib import *

NAME = 'concat_heads__ssm_conv_s4__ssm_conv_h3__prompt'
STAMP = '--stamp' in sys.argv
OPT = dict(a.split('=') for a in sys.argv[1:] if '=' in a)
def opt(k, d): return type(d)(OPT.get(k, d))

I = Ins
def vr(a, n=1): return 'v%d' % a if n == 1 else 'v[%d:%d]' % (a, a + n - 1)
def flit(x): return '0x%08x' % struct.unpack('<I', struct.pack('<f', float(x)))[0]
def lit(x): return '0x%08x' % (x & 0xffffffff)

TRES, ACC, UB, TS = 128, 96, 80, 64
vT, vU, vRw, vYw, vTr, vG, vH, vQ, vO, vBp, vLane = 1, 2, 3, 4, 5, 6, 7, 8, 9, 10, 11
sW, sSub, sCh0, sWr, sBlk, sGrp = 4, 5, 6, 7, 44, 45
def ptr(i): return 's[%d:%d]' % (8 + 2 * i, 9 + 2 * i)
P_U, P_LDT, P_DSK, P_Q, P_K, P_V, P_SH, P_SK, P_SD, P_OUT = 0, 7, 8, 9, 10, 11, 12, 13, 14, 15
sT0, sT1 = 46, 47
TMP = 46
RORD = [0, 1, 2, 3, 4, 5, 6, 7]
def tres(p, r): return TRES + (p * 8 + r) * 4
def acc(c): return ACC + 4 * c

B_BLK, B_F1, B_R0, B_RS, B_Y, B_YS = 17616, opt('f1', 4224), 8464, 4576, 140928, 2112
vT2 = 0
A_RS, A_S0, A_SS, A_KE1, A_HA, A_Y = 4624, 36992, 15424, 1216, 2336, 4160
LDS_BYTES = 160384

PROBE = opt('probe', -1)
PTYPE = OPT.get('ptype', 'AB')
def stamp(k):
    if PROBE >= 0:
        if k == 0: return [I('s_memtime s[60:61]'), WAIT(lg=0)]
        if k == PROBE: return [I('s_memtime s[62:63]'), WAIT(lg=0)]
        return []
    if not STAMP: return []
    assert k < 14
    return [I('%s s[%d:%d]' % ('s_memrealtime' if opt('rt', 0) else 's_memtime', 64 + 2 * k, 65 + 2 * k)), WAIT(lg=0)]
def probe_end(typ):
    if PROBE < 0 or typ not in PTYPE: return []
    o = [I('s_waitcnt vmcnt(0) lgkmcnt(0)'), I('s_memtime s[56:57]'), WAIT(lg=0)]
    if PROBE == 100: o += [I('s_mov_b32 s58, 24000')]
    elif PROBE == 99: o += [I('s_sub_u32 s58, s56, s60')]
    else: o += [I('s_sub_u32 s58, s62, s60')]
    o += ['L_spin%s:' % typ, I('s_memtime s[54:55]'), WAIT(lg=0), I('s_sub_u32 s59, s54, s56'), I('s_cmp_lt_u32 s59, s58'), I('s_cbranch_scc1 L_spin%s' % typ)]
    return o
def stamp_out():
    if not STAMP: return []
    o = [I('s_waitcnt vmcnt(0) lgkmcnt(0)')] + stamp(13) + [I('s_memrealtime s[94:95]'),
         I('s_load_dwordx2 s[40:41], s[0:1], 136'),
         I('s_lshl_b32 s42, s2, 3'), I('s_add_u32 s42, s42, s%d' % sW), I('s_lshl_b32 s42, s42, 7'),
         I('v_mov_b32 v12, s42'), WAIT(lg=0)]
    for k in range(16):
        o += [I('v_mov_b32 v%d, s%d' % (14 + 2 * k, 64 + 2 * k)), I('v_mov_b32 v%d, s%d' % (15 + 2 * k, 65 + 2 * k)),
              I('global_store_dwordx2 v12, v[%d:%d], s[40:41] offset:%d' % (14 + 2 * k, 15 + 2 * k, 8 * k))]
    return o

def dst(k): return stamp(k) if opt('dbg', 0) else []
def nogap(l): return [x for x in l if not isinstance(x, GAP)]

def u_load(q, r, reg, extra=0):
    s = 8 * q - r
    return I('ds_read_b128 %s, v%d offset:%d' % (vr(reg, 4), vU, 64 * (56 - s) + extra))
def MF(d, x, y, c=None):
    return I('v_mfma_f32_16x16x32_bf16 %s, %s, %s, %s' % (vr(d, 4), vr(x, 4), vr(y, 4), '0' if c is None else vr(c, 4)))
def ymask(typ): return 1 if typ == 'B' else 3
def y_write(typ, Q, tmp):
    o = []
    for h in range(2):
        c = 2 * Q + h
        o += [I('v_cvt_pk_bf16_f32 v%d, v%d, v%d' % (tmp + 2 * h, acc(c), acc(c) + 1)),
              I('v_cvt_pk_bf16_f32 v%d, v%d, v%d' % (tmp + 2 * h + 1, acc(c) + 2, acc(c) + 3)),
              I('ds_write_b64 v%d, %s offset:%d' % (vYw, vr(tmp + 2 * h, 2), (Q & ymask(typ)) * 1024 + h * 512))]
    return o
def spread(mf, ops, first=0):
    out = list(mf[:first]); mf = mf[first:]
    n = len(mf); k = 0
    if n == 0: return out + ops
    for i, m in enumerate(mf):
        out.append(m)
        want = (len(ops) * (i + 1) + n - 1) // n
        while k < want:
            out.append(ops[k]); k += 1
    return out
def tB_load(p, r):
    t = 8 * p + r
    reg = tres(p, r) if p < 4 else TS + (p - 4) * 4
    if B_F1 == 4168:
        return [I('ds_read2_b64 %s, v%d offset0:%d offset1:%d' % (vr(reg, 4), vT if t < 32 else vT2, 8 * (t & 31), 8 * (t & 31) + 1))]
    return [I('ds_read_b64 %s, v%d offset:%d' % (vr(reg, 2), vT, 64 * t)),
            I('ds_read_b64 %s, v%d offset:%d' % (vr(reg + 2, 2), vT, 64 * t + 8))]

class Acc:
    def __init__(self): self.started = set()
    def mf(self, c, x, y):
        first = c not in self.started
        self.started.add(c)
        return MF(acc(c), x, y, None if first else acc(c))

vA1, vA1b, vHa, DUMMY = 7, 8, 0, 10
A_STG, vP, SIGT = 12, 20, 24
BD9, BD7, BD5, BD3, T32, M16 = 28, 32, 36, 40, 44, 48
XU = 52
HF, H3E, H3O, T16 = 192, 208, 220, 232
DT = [236, 240, 244, 248, 252, 64]

def emit_m(a, typ, ph, code, do_early, do_late, first):
    early = [int(z) for z in OPT.get('early' + typ, '8,8,10,10').split(',')][ph]
    mid = [int(z) for z in OPT.get('mid', '96,68,42,0').split(',')][ph] if typ == 'B' else (opt('amid', 60) if ph == 0 else 0)
    cnt = 0
    for x in code:
        if early == 0 and cnt == 0 and isinstance(x, Ins) and x.kind == 'mfma' and do_early:
            a.run([I('s_barrier'), I('s_setprio %d' % opt('mprio', 1))])
        a.run([x])
        if isinstance(x, Ins) and x.kind == 'mfma':
            cnt += 1
            if cnt == early and do_early:
                if first: a.run([I('s_cmp_eq_u32 s%d, 0' % sGrp), I('s_cbranch_scc1 L_%s_nb' % typ), I('s_barrier'), 'L_%s_nb:' % typ, I('s_setprio %d' % opt('mprio', 1))])
                else: a.run([I('s_barrier'), I('s_setprio %d' % opt('mprio', 1))])
            if (typ, ph, cnt) in MHOOK: MHOOK[(typ, ph, cnt)](a)
            if cnt == mid:
                wi = [len(a.lg) - 1 - i for i, (r, t) in enumerate(a.lg) if not r]
                if wi: a.wait(None, min(wi))
                if typ == 'A': assert sum('ds_write_b64 v%d,' % vYw in z for z in a.out) == 2
                a.run([I('s_cmp_eq_u32 s%d, 0' % sGrp), I('s_cbranch_scc1 L_%s_nm%d' % (typ, ph)), I('s_barrier'), 'L_%s_nm%d:' % (typ, ph)])
    a.run((stamp(2) if opt('dbg', 0) == 2 and first and do_late else []) + ([BARRIER()] if do_late else []))
    a.run([WAIT(lg=0)])
    if do_late: a.add('s_setprio %d' % opt('sprio', 0))

def with_y(typ, ph, allm, tmp, skip):
    idx = [i for i, x in enumerate(allm) if x.kind == 'mfma']
    ycut = idx[min(len(idx) - 1, skip - 1)] + 1
    o, left = interleave(allm[ycut:], y_write(typ, ph, tmp), rate=2)
    return allm[:ycut] + o + left

DEFER = {0: [], 1: [(5, 2), (5, 1)], 2: [(5, 2), (5, 1), (4, 3), (4, 2)], 3: [(5, 2), (5, 1), (4, 3)]}[opt('defer', 1)]
MHOOK = {}
def m_block_B(a, ph, ac, do_early, do_late, first):
    qs = [2 * ph, 2 * ph + 1]
    items = [(q, p) for q in qs for p in range(0, 8 - q) if (q, p) not in DEFER]
    if ph == 3:
        items = DEFER + items
        qs = sorted(set(q for q, p in items))
    nq = len(qs)
    stream = ph < 2
    if stream: ring, dist = [UB, UB + 8], 1
    elif nq == 2: ring, dist = [UB, UB + 8, TS, TS + 8], (3 if len(items) < 5 else 2)
    elif nq == 3: ring, dist = [TS, TS + 12, 36], 2
    else: ring, dist = [TS, UB, 36], 2
    ureg = lambda k, q: ring[k % len(ring)] + qs.index(q) * 4
    uld = lambda k: [u_load(q, RORD[k], ureg(k, q)) for q in qs] if k < 8 else []
    code = []
    for k in range(dist): code += uld(k)
    ps = list(range(4, 8 - 2 * ph)) if stream else []
    carry = []
    for p in ps: carry += tB_load(p, RORD[0])
    for k, r in enumerate(RORD):
        last = k == 7
        res = [it for it in items if it[1] < 4]
        st = [it for it in items if it[1] >= 4]
        if opt('zz', 0):
            res.sort(key=lambda it: (it[0] + it[1], it[0] if (it[0] + it[1]) & 1 else -it[0]))
            st.sort(key=lambda it: (it[1], it[0]))
        else:
            if last: res.sort(key=lambda it: (it[0] + it[1] > 2 * ph + 1, it[0] + it[1] if ph == 3 else 0, it[0], it[1]))
            st.sort(key=lambda it: (it[1], -it[0]))
        mres = [ac.mf(p + q, tres(p, r), ureg(k, q)) for q, p in res]
        ops = carry + uld(k + dist)
        step = spread(mres[:len(ops)], ops) + mres[len(ops):]
        pend = []
        for i, (q, p) in enumerate(st):
            step.append(ac.mf(p + q, TS + (p - 4) * 4, ureg(k, q)))
            if not last and (i + 1 == len(st) or st[i + 1][1] != p): pend += tB_load(p, RORD[k + 1])
            if pend: step.append(pend.pop(0))
        carry = pend
        if last: step = with_y('B', ph, step, ring[(k + 1) % len(ring)], (3 + opt('ydist', 3)) if ph < 3 else 99)
        code += step
    emit_m(a, 'B', ph, code, do_early, do_late, first)

def m_block_A(a, ph, ac, do_early, do_late, first):
    qs = (2 * ph, 2 * ph + 1)
    ring, dist = [UB, UB + 8, TS + 8], 2
    if ph == 3: ring, dist = [UB, UB + 8, TS, TS + 8], 3
    ureg = lambda k, q: ring[k % len(ring)] + (q - 2 * ph) * 4
    uld = lambda k: [u_load(q, RORD[k], ureg(k, q)) for q in qs] if k < 8 else []
    kinds = ([(BD7, BD9)] if ph < 2 else []) + [(BD5, BD5), (BD3, BD3)]
    xl = lambda f: [u_load(f, 0, XU), u_load(f, 0, XU + 4, extra=16)]
    def box():
        o = []
        for i, (b0, b1) in enumerate(kinds): o += [MF(DT[2 * i], XU, b0), MF(DT[2 * i + 1], XU + 4, b1)]
        return o
    def cvt():
        o = []
        for i in range(len(kinds)):
            o += [I('v_cvt_pk_bf16_f32 v%d, v%d, v%d' % (XU + 4 * i + j, DT[2 * i] + 3 - j, DT[2 * i + 1] + 3 - j)) for j in range(4)]
        return o
    def fin(f):
        o = []; z = XU
        if ph < 2:
            o += [ac.mf(4 + f + d, z, HF + 4 * d) for d in range(4 - f)]; z += 4
        for hf in (H3O, H3E):
            o += [ac.mf(f + d, z, hf + 4 * (d - 2)) for d in (2, 3, 4) if f + d <= 7]; z += 4
        return o
    code = uld(0) + (xl(qs[0]) if ph < 3 else [])
    for k in range(1, dist): code += uld(k)
    cq = []
    for k, r in enumerate(RORD):
        last = k == 7
        res = [(q, p) for q in qs for p in range(0, min(2, 8 - q))]
        if last: res.sort(key=lambda it: (it[0] + it[1] > 2 * ph + 1, it[0], it[1]))
        mres = [ac.mf(p + q, tres(p, r), ureg(k, q)) for q, p in res]
        if k == 0 and ph < 3: mres += [ac.mf(2 + q, T16, ureg(k, q)) for q in qs]
        if k == 0 and ph < 2: mres += [ac.mf(4 + q, T32, ureg(k, q)) for q in qs]
        step = spread(mres[:2], uld(k + dist)) + mres[2:]
        if cq:
            step, cq = interleave(step, cq, rate=2)
        if ph < 3:
            if k in (0, 4): step += box(); cq = [GAP(0)] + cvt()
            if k == 2: step += cq + fin(qs[0]) + xl(qs[1]); cq = []
            if k == 6: step += cq; cq = []
            if last: step += fin(qs[1])
        if last: step = with_y('A', ph, step, ring[(k + 1) % len(ring)], 3 + opt('ydist', 3))
        code += step
    emit_m(a, 'A', ph, code, do_early, do_late, first)

def rd2(reg, ad, d):
    return [I('ds_read2_b32 %s, v%d offset0:%d offset1:%d' % (vr(reg, 2), ad, d, d + 1)),
            I('ds_read2_b32 %s, v%d offset0:%d offset1:%d' % (vr(reg + 2, 2), ad, d + 2, d + 3))]
A_PRE = opt('apre', 2)
def tA_load(r):
    return rd2(tres(0, r), vA1, 16 * r) + rd2(tres(1, r), vA1, 16 * (8 + r))

def m_group0_A(a, ac):
    ring = [UB, UB + 8, TS + 8]
    ZS = [[60, 48, 68], [24, 12, 16]]
    ureg = lambda K, h: ring[K % 3] + 4 * h
    uld = lambda K: [u_load(2 * (K >> 3) + h, RORD[K & 7], ureg(K, h)) for h in range(2)]
    kinds = [(BD7, BD9), (BD5, BD5), (BD3, BD3)]
    xl = lambda f: [u_load(f, 0, XU), u_load(f, 0, XU + 4, extra=16)]
    def box():
        o = []
        for i, (b0, b1) in enumerate(kinds): o += [MF(DT[2 * i], XU, b0), MF(DT[2 * i + 1], XU + 4, b1)]
        return o
    def cvt(f):
        return [I('v_cvt_pk_bf16_f32 v%d, v%d, v%d' % (ZS[f & 1][i] + j, DT[2 * i] + 3 - j, DT[2 * i + 1] + 3 - j)) for i in range(3) for j in range(4)]
    def fin(f):
        z = ZS[f & 1]
        return ([ac.mf(f + d, z[1], H3O + 4 * (d - 2)) for d in (2, 3, 4)] + [ac.mf(f + d, z[2], H3E + 4 * (d - 2)) for d in (2, 3, 4)]
                + [ac.mf(4 + f + d, z[0], HF + 4 * d) for d in range(4 - f)])
    def step(K):
        ph, r = K >> 3, RORD[K & 7]
        o = [ac.mf(p + 2 * ph + h, tres(p, r), ureg(K, h)) for h in range(2) for p in range(2)]
        if (K & 7) == 0:
            o += [ac.mf(2 + 2 * ph + h, T16, ureg(K, h)) for h in range(2)] + [ac.mf(4 + 2 * ph + h, T32, ureg(K, h)) for h in range(2)]
        return o
    hl = []
    for d in range(3): hl += rd2(H3O + 4 * d, vHa, 48 + 16 * d)
    for d in range(3): hl += rd2(H3E + 4 * d, vHa, 16 * d)
    for d in range(4): hl += rd2(HF + 4 * d, vHa, 96 + 16 * d)
    seq = []
    def S_(K): return (lambda: step(K), uld(K + 2) if K + 2 < 16 else [], [])
    plan = [S_(0), ('box', 0), S_(1), S_(2), ('box', 1), S_(3), S_(4), S_(5), S_(6), S_(7), ('y', 0),
            S_(8), S_(9), S_(10), S_(11), S_(12), ('fin', 0), ('box', 2), ('fin', 1), S_(13), ('box', 3), ('fin', 2), S_(14), S_(15), ('y', 1), ('fin', 3)]
    code = uld(0) + xl(0) + uld(1)
    urgent, lazy, vq = [], [], []
    for r in range(A_PRE, 8): lazy += tA_load(RORD[r])
    lazy += hl
    issued = []
    def need(m):
        o = []
        for q in (urgent, lazy):
            idx = [i for i, l in enumerate(q) if l.wr & m.rd]
            if idx:
                o += q[:idx[-1] + 1]; del q[:idx[-1] + 1]
        idx = [i for i, v in enumerate(vq) if isinstance(v, Ins) and (v.wr & m.rd or v.rd & m.wr)]
        if idx:
            o += [v for v in vq[:idx[-1] + 1] if isinstance(v, Ins)]; del vq[:idx[-1] + 1]
        return o
    for it in plan:
        post_u, post_v = [], []
        if it[0] == 'box':
            ms = box(); post_v = [None, None] + cvt(it[1])
            if it[1] < 3: post_u = xl(it[1] + 1)
        elif it[0] == 'fin': ms = fin(it[1])
        elif it[0] == 'y':
            vq += [None, None, None] + y_write('A', it[1], 20); continue
        else:
            ms = it[0](); urgent += it[1]
        for m in ms:
            code += need(m) + [m]
            if urgent: code.append(urgent.pop(0))
            elif lazy: code.append(lazy.pop(0))
            for _ in range(2):
                if vq:
                    v = vq.pop(0)
                    if v is None: break
                    code.append(v)
        urgent += post_u; vq += post_v
    code += [v for v in vq if v is not None]
    assert not urgent and not lazy
    emit_m(a, 'A', 0, code, True, True, True)

def m_block(a, typ, ph, ac, do_early=True, do_late=True, first=False):
    assert not a.lg
    if typ == 'A' and ph == 0: m_group0_A(a, ac)
    else: (m_block_A if typ == 'A' else m_block_B)(a, ph, ac, do_early, do_late, first)

class Grp:
    def __init__(self, g):
        self.g = g; self.vm = []
        self.gc = g; self.qt = g; self.ot = g

def adv(reg, delta):
    return [I('v_add_u32 v%d, %s, v%d' % (reg, lit(delta), reg))] if delta else []

def out_unit(typ, G, t, qreg, OT=84):
    y = OT; t0 = OT + 4; res = OT + 6
    ys = B_YS if typ == 'B' else A_SS
    off = 512 + ((t >> 1) & ymask(typ)) * 1024 + ((t & 1) - G.g) * 512
    o = [I('ds_read_b64_tr_b16 %s, v%d offset:%d' % (vr(y, 2), vTr, off)),
         I('ds_read_b64_tr_b16 %s, v%d offset:%d' % (vr(y + 2, 2), vTr, off + 4 * ys))]
    o += adv(vO, (t - G.ot) * 0x100000); G.ot = t
    if typ == 'B':
        for i in range(4):
            o += [I('v_lshlrev_b32 v%d, 16, v%d' % (t0 + 1, qreg + i)),
                  I('v_and_b32 v%d, 0xffff0000, v%d' % (qreg + i, qreg + i)),
                  I('v_lshlrev_b32 v%d, 16, v%d' % (t0, y + i)),
                  I('v_and_b32 v%d, 0xffff0000, v%d' % (y + i, y + i)),
                  I('v_mul_f32 v%d, v%d, v%d' % (t0, t0, t0 + 1)),
                  I('v_mul_f32 v%d, v%d, v%d' % (y + i, y + i, qreg + i)),
                  I('v_cvt_pk_bf16_f32 v%d, v%d, v%d' % (res + i, t0, y + i))]
        o.append(I('global_store_dwordx4 v%d, %s, %s %s' % (vO, vr(res, 4), ptr(P_OUT), OPT.get('st', '') if t < opt('stn', 8) else '')))
    else:
        o.append(I('global_store_dwordx4 v%d, %s, %s %s' % (vO, vr(y, 4), ptr(P_OUT), OPT.get('st', '') if t < opt('stn', 8) else '')))
    return o

def lane_consts(typ, t0=TMP):
    ys = B_YS if typ == 'B' else A_SS
    yb = B_Y if typ == 'B' else A_S0 + A_Y
    t1 = t0 + 1
    o = [I('s_mul_i32 s%d, s%d, %d' % (sT0, sW, ys)), I('s_add_u32 s%d, s%d, %d' % (sT0, sT0, yb)),
         I('v_lshl_add_u32 v%d, v%d, 3, s%d' % (vYw, vLane, sT0)),
         I('s_lshl_b32 s%d, s%d, 7' % (sT0, sW)), I('s_add_u32 s%d, s%d, %d' % (sT0, sT0, yb - 512)),
         I('v_bfe_u32 v%d, v%d, 2, 2' % (t0, vLane)),
         I('v_mul_u32_u24 v%d, %d, v%d' % (t0, ys, t0)),
         I('v_lshrrev_b32 v%d, 4, v%d' % (t1, vLane)),
         I('v_lshl_add_u32 v%d, v%d, 5, v%d' % (t0, t1, t0)),
         I('v_and_b32 v%d, 3, v%d' % (t1, vLane)),
         I('v_lshl_add_u32 v%d, v%d, 3, v%d' % (t0, t1, t0)),
         I('v_add_u32 v%d, s%d, v%d' % (vTr, sT0, t0)),
         I('s_lshl_b32 s%d, s%d, 6' % (sT0, sW)), I('s_and_b32 s%d, s%d, 0x100' % (sT0, sT0)), I('s_and_b32 s%d, s%d, 3' % (sT1, sW))]
    if typ == 'B':
        o += [I('s_lshl_b32 s%d, s%d, 3' % (sT1, sT1)), I('s_add_u32 s%d, s%d, s%d' % (sT0, sT0, sT1)),
              I('v_lshrrev_b32 v%d, 3, v%d' % (t0, vLane)),
              I('v_lshlrev_b32 v%d, 5, v%d' % (t0, t0)),
              I('v_lshl_add_u32 v%d, v%d, 1, v%d' % (t0, t1, t0)),
              I('v_bfe_u32 v%d, v%d, 2, 1' % (t1, vLane)),
              I('v_add3_u32 v%d, v%d, v%d, s%d' % (t0, t0, t1, sT0)),
              I('s_lshl_b32 s%d, s%d, 1' % (sT1, sCh0)),
              I('v_lshl_add_u32 v%d, v%d, 11, s%d' % (vQ, t0, sT1)),
              I('s_add_u32 s%d, s%d, 2048' % (sT1, sT1)),
              I('v_lshl_add_u32 v%d, v%d, 12, s%d' % (vO, t0, sT1))]
    else:
        o += [I('s_lshl_b32 s%d, s%d, 2' % (sT1, sT1)), I('s_add_u32 s%d, s%d, s%d' % (sT0, sT0, sT1)),
              I('v_lshrrev_b32 v%d, 2, v%d' % (t0, vLane)),
              I('v_lshl_add_u32 v%d, v%d, 4, v%d' % (t0, t0, t1)),
              I('v_add_u32 v%d, s%d, v%d' % (t0, sT0, t0)),
              I('s_lshl_b32 s%d, s%d, 1' % (sT1, sCh0)),
              I('v_lshl_add_u32 v%d, v%d, 12, s%d' % (vO, t0, sT1))]
    return o

def gather_addr(ta, tc, tt):
    return [I('s_lshl_b32 s%d, s%d, 17' % (sT0, sWr)), I('s_lshl_b32 s%d, s%d, 1' % (sT1, sCh0)), I('s_add_u32 s%d, s%d, s%d' % (sT0, sT0, sT1)),
            I('s_add_u32 s%d, s%d, 4096' % (sT0, sT0)),
            I('v_lshrrev_b32 v%d, 2, v%d' % (ta, vLane)), I('v_and_b32 v%d, 3, v%d' % (tc, vLane)),
            I('v_lshlrev_b32 v%d, 13, v%d' % (tt, ta)), I('v_lshl_add_u32 v%d, v%d, 2, v%d' % (tt, tc, tt)),
            I('v_add_u32 v%d, s%d, v%d' % (vG, sT0, tt))]

def pingpong(a, typ, Go, Gy, sblocks, final, groups):
    ac = Acc()
    L = lambda s: 'L_%s_%s' % (typ, s)
    n = len(groups)
    def sblk(G, h):
        a.vm = G.vm; a.hist = []
        if not (opt('dbg', 0) == 1 and h == 7): a.run(stamp(5 + h))
        if h == 0 and opt('sprio', 0): a.add('s_setprio %d' % opt('sprio', 0))
        sw = nogap(sblocks[h](G))
        if opt('noside', 0): sw = [z for z in sw if not isinstance(z, Ins)]
        if opt('novm', 0): sw = [z for z in sw if not (isinstance(z, Ins) and z.kind in ('vld', 'vst'))]
        if opt('nodsw', 0): sw = [z for z in sw if not (isinstance(z, Ins) and z.kind in ('dsw',))]
        if opt('nomf', 0): sw = [z for z in sw if not (isinstance(z, Ins) and z.kind in ('mfma',))]
        a.run(sw)
        a.run([WAIT(lg=0)])
        if opt('sprio', 0): a.add('s_setprio 0')
        if h == 2 * n - 1: a.add('s_barrier')
        if opt('send', 0): a.run(stamp(5 + h))
        G.vm = a.vm
    a.run([I('s_cmp_eq_u32 s%d, 0' % sGrp), I('s_cbranch_scc1 %s' % L('M0'))])
    sblk(Gy, 0)
    for j, phs in enumerate(groups):
        a.run([L('M%d' % j) + ':'])
        a.vm = []; a.hist = []
        for i, ph in enumerate(phs):
            m_block(a, typ, ph, ac, do_early=(i == 0), do_late=(i == len(phs) - 1), first=(j == 0))
        assert not a.vm
        if j < n - 1:
            a.run([I('s_cmp_eq_u32 s%d, 0' % sGrp), I('s_cbranch_scc1 %s' % L('S%d' % (2 * j + 1)))])
            sblk(Gy, 2 * j + 2)
            if j == n - 2:
                a.run(adv(vO, (6 + Gy.g - Gy.ot) * 0x100000)); Gy.ot = 6 + Gy.g
            a.run([I('s_branch %s' % L('M%d' % (j + 1))), L('S%d' % (2 * j + 1)) + ':'])
            sblk(Go, 2 * j + 1)
        else:
            a.run([I('s_cmp_lg_u32 s%d, 0' % sGrp), I('s_cbranch_scc1 %s' % L('F'))])
            sblk(Go, 2 * n - 1)
            a.run(adv(vO, (6 + Go.g - Go.ot) * 0x100000)); Go.ot = 6 + Go.g
            a.run([L('F') + ':'])
    final(Go, Gy)

AM, STG, QB = 12, [36, 48], 60

def B_gather(G, c, st):
    s = STG[st]
    o = adv(vG, (c - G.gc) * 0x80000) + adv(vH, (c - G.gc) * 0x80000); G.gc = c
    o.append(I('global_load_dwordx4 %s, v%d, %s' % (vr(s, 4), vG, ptr(P_K))))
    o.append(I('buffer_load_dwordx4 %s, v%d, s[48:51], 0 offen' % (vr(s + 8, 4), vH)))
    o.append(I('global_load_dwordx4 %s, v%d, %s' % (vr(s + 4, 4), vG, ptr(P_V))))
    return o

def B_kv(G, c, st, prio=True):
    s = STG[st]
    K, V, H = s, s + 4, s + 8
    D, DV, cv = TS, TS + 8, UB
    o = [I('v_mov_b32_dpp v%d, v%d row_shr:1 row_mask:0xf bank_mask:0xf' % (H + i, K + i)) for i in range(4)]
    o.append(I('v_mov_b32 v%d, v%d' % (cv, V)))
    if prio: o.append(I('s_setprio 3'))
    o += [MF(D, AM, K), MF(D + 4, AM + 4, K), MF(DV, AM + 16, V), MF(D, AM + 8, H, D), MF(D + 4, AM + 12, H, D + 4), MF(DV + 4, AM + 20, V)]
    if prio: o.append(I('s_setprio %d' % opt('sprio', 0)))
    w = []
    for e in range(2):
        ou = D + 4 * e; t = cv + 4 * e
        v = [I('v_mul_f32 v%d, v%d, v%d' % (ou + i, ou + i, DV + 4 * e + i)) for i in range(4)]
        v += [I('v_cvt_pk_bf16_f32 v%d, v%d, v%d' % (t, ou + 3, ou + 2)),
              I('v_cvt_pk_bf16_f32 v%d, v%d, v%d' % (t + 1, ou + 1, ou)),
              I('v_cvt_pk_bf16_f32 v%d, v%d, v%d' % (t + 2, ou + 2, ou + 1))]
        o += zipper(v, w) if w else v
        off = e * B_BLK + 512 * (7 - c + G.g)
        w = [I('ds_write_b64 v%d, %s offset:%d' % (vRw, vr(t, 2), off + 2 + B_RS)),
             I('ds_write_b16 v%d, v%d offset:%d' % (vRw, t, off)),
             I('ds_write_b32 v%d, v%d offset:%d' % (vRw, t + 2, off + 2)),
             I('ds_write_b16_d16_hi v%d, v%d offset:%d' % (vRw, t + 1, off + 6))]
    return o + w

def B_q(G, t, reg):
    o = adv(vQ, (t - G.qt) * 0x80000); G.qt = t
    return o + [I('global_load_dwordx4 %s, v%d, %s' % (vr(reg, 4), vQ, ptr(P_Q)))]

def wb1(typ, h):
    L = 'L_wb%s%d' % (typ, h)
    def raw(a): a.out.append('    buffer_wbl2 sc1')
    return [I('s_and_b32 s%d, s%d, 3' % (sT0, sW)), I('s_and_b32 s%d, s%d, 0x78' % (sT1, sCh0)), I('s_or_b32 s%d, s%d, s%d' % (sT0, sT0, sT1)),
            I('s_cmp_lg_u32 s%d, 0' % sT0), I('s_cbranch_scc1 %s' % L), raw, L + ':']

def pf(text):
    x = I(text); x.wr = set(); return x

def fdma(cs, js):
    o = []
    for c in cs:
        o += [I('s_add_u32 m0, s%d, %d' % (sBlk, c * B_F1 + 64))]
        o += [I('buffer_load_dwordx4 v%d, s[52:55], %s offen offset:%d lds' % (vBp, '4' if c else '0', 1024 * j), tag='flt') for j in js]
    return o

def early_B(a):
    a.run([I('s_mul_i32 s%d, s%d, %d' % (sBlk, sW, B_BLK)), I('s_lshl_b32 s%d, s3, 12' % sT0),
           I('v_lshl_add_u32 v%d, v%d, 4, s%d' % (vBp, vLane, sT0)), I('v_mov_b32 v16, s%d' % sT0),
           I('s_mov_b32 s54, 0x400000'), I('s_mov_b32 s55, 0x20000'), WAIT(lg=0)])
    a.run(stamp(1))
    a.run([I('s_mov_b32 s52, s%d' % (8 + 2 * P_SK)), I('s_mov_b32 s53, s%d' % (9 + 2 * P_SK))])
    a.run(fdma([0], [0, 1]))
    a.run([I('global_load_dword v76, v16, %s' % ptr(P_SK)), I('global_load_ushort v77, v17, %s' % ptr(P_SD))])

def only_older(a, code, L):
    vm = list(a.vm)
    a.run([I('s_cmp_lg_u32 s%d, 0' % sGrp), I('s_cbranch_scc1 %s' % L)])
    a.run(code)
    a.run([L + ':'])
    a.vm = vm

def gen_B(a):
    X = 64
    n_, g_, t0, t1, t2 = X, X + 1, X + 2, X + 3, X + 4
    vS = X + 8
    lS, lK0, lD = X + 10, X + 12, X + 13
    a.run(['L_B:'])
    a.run([I('s_xor_b32 s%d, s%d, 1' % (sGrp, sGrp))])
    only_older(a, fdma([0], [2, 3]), 'L_B_nf')
    a.run([I('v_and_b32 v%d, 15, v%d' % (n_, vLane)), I('v_lshrrev_b32 v%d, 4, v%d' % (g_, vLane)),
           I('v_sub_u32 v%d, v%d, v%d' % (t0, n_, g_)), I('v_and_b32 v%d, 3, v%d' % (t0, t0)),
           I('v_and_b32 v%d, 12, v%d' % (t1, n_)), I('v_lshlrev_b32 v%d, 2, v%d' % (t1, t1)),
           I('v_lshl_add_u32 v%d, v%d, 1, v%d' % (t0, t0, t1)),
           I('s_lshl_b32 s%d, s%d, 3' % (sT0, sCh0)), I('v_add_u32 v%d, s%d, v%d' % (vS, sT0, t0)),
           I('global_load_ushort v%d, v%d, %s' % (lS, vS, ptr(P_SH))),
           I('global_load_ushort v%d, v%d, %s offset:8' % (lS + 1, vS, ptr(P_SH))),
           I('s_mov_b32 s48, s%d' % (8 + 2 * P_K)), I('s_mov_b32 s49, s%d' % (9 + 2 * P_K)),
           I('s_mov_b32 s50, 0x400000'), I('s_mov_b32 s51, 0x20000'),
           I('v_lshl_add_u32 v%d, v%d, 2, v%d' % (t0, n_, g_)),
           I('s_lshl_b32 s%d, s%d, 17' % (sT0, sW)), I('s_lshl_b32 s%d, s%d, 1' % (sT1, sCh0)), I('s_add_u32 s%d, s%d, s%d' % (sT0, sT0, sT1)),
           I('v_lshl_add_u32 v%d, v%d, 11, s%d' % (vG, t0, sT0)),
           I('v_add_u32 v%d, -1, v%d' % (t0, t0)), I('v_add_u32 v%d, 0xffffe000, v%d' % (vH, vG)),
           I('v_cmp_gt_u32 vcc, 3, v%d' % t0), I('v_mov_b32 v%d, 0x80000000' % t1),
           I('v_cndmask_b32 v%d, v%d, v%d, vcc' % (vH, t1, vH))])
    G0 = Grp(0)
    a.run([I('v_mul_u32_u24 v%d, %d, v%d' % (t0, 2 * B_BLK, g_)),
           I('v_lshlrev_b32 v%d, 3, v%d' % (t1, n_)), I('v_sub_u32 v%d, v%d, v%d' % (t0, t0, t1)),
           I('s_lshl_b32 s%d, s%d, 7' % (sT0, sW)), I('s_sub_u32 s%d, %d, s%d' % (sT0, 504 + B_R0 - 2, sT0)),
           I('v_add_u32 v%d, s%d, v%d' % (vRw, sT0, t0)),
           I('v_add_u32 v%d, 1, v%d' % (t0, n_)),
           I('v_and_b32 v%d, 1, v%d' % (t1, t0)), I('v_and_b32 v%d, 30, v%d' % (t0, t0)),
           I('v_mul_u32_u24 v%d, %d, v%d' % (t1, B_F1, t1)),
           I('v_lshl_add_u32 v%d, v%d, 2, v%d' % (t0, t0, t1)),
           I('v_and_b32 v%d, 48, v%d' % (t2, vLane)),
           I('v_add3_u32 v%d, v%d, v%d, s%d' % (vT, t0, t2, sBlk)),
           I('v_add_u32 v%d, 2048, v%d' % (vT2, vT)),
           I('v_and_b32 v%d, 1, v%d' % (t0, vLane)), I('v_mul_u32_u24 v%d, %d, v%d' % (t0, B_RS, t0)),
           I('v_and_b32 v%d, 14, v%d' % (t1, vLane)), I('v_lshlrev_b32 v%d, 5, v%d' % (t1, t1)),
           I('v_sub_u32 v%d, v%d, v%d' % (t0, t0, t1)),
           I('s_add_u32 s%d, s%d, %d' % (sT0, sBlk, B_R0 + 448)),
           I('v_add3_u32 v%d, v%d, v%d, s%d' % (vU, t0, t2, sT0))])
    a.run(lane_consts('B', t0))
    Z = X + 16
    a.run([I('v_mov_b32 v%d, 0' % (Z + i)) for i in range(4)])
    a.run([I('v_and_b32 v%d, 31, v%d' % (t0, vLane)), I('v_min_u32 v%d, 27, v%d' % (t0, t0)),
           I('v_lshrrev_b32 v%d, 5, v%d' % (t1, vLane)), I('v_mul_u32_u24 v%d, %d, v%d' % (t1, B_RS, t1)),
           I('v_lshl_add_u32 v%d, v%d, 4, v%d' % (t0, t0, t1)),
           I('v_add_u32 v%d, s%d, v%d' % (t0, sBlk, t0)), I('v_mov_b32 v%d, s%d' % (t1, sBlk)),
           I('ds_write_b128 v%d, %s offset:%d' % (t0, vr(Z, 4), B_R0 + 4096)),
           I('ds_write_b16 v%d, v%d offset:%d' % (t1, Z, B_R0 + 4094)),
           I('v_min_u32 v%d, 32, v%d' % (QB, vLane)),
           I('v_cmp_lt_u32 vcc, 16, v%d' % QB),
           I('v_mov_b32 v%d, %d' % (t1, B_F1 - 68)),
           I('s_mov_b32 s56, 0x00010000'), I('s_mov_b32 s57, -1'),
           I('v_cndmask_b32 v%d, 0, v%d, vcc' % (t1, t1)),
           I('v_lshl_add_u32 v%d, v%d, 2, v%d' % (t1, QB, t1)),
           I('v_add_u32 v%d, s%d, v%d' % (QB, sBlk, t1))])
    BM = [96, 98, 100, 58]
    for i in range(4):
        a.run([I('s_mov_b32 s%d, 0x%08x' % (BM[i], 0x000f000f << (4 * i))), I('s_mov_b32 s%d, 0x%08x' % (BM[i] + 1, 0x000f000f << (4 * i)))])
    a.run([I('s_mov_b32 s40, 0xeeeeffff'), I('s_mov_b32 s41, 0x8888cccc'),
           I('s_mov_b32 s42, 0x22221111'), I('s_mov_b32 s43, 0x88884444'),
           I('v_mov_b32 v%d, 0x3f80' % t0), I('v_mov_b32 v%d, 1.0' % t1),
           I('v_cndmask_b32 v%d, 0, v%d, s[42:43]' % (t0, t0)), I('v_cndmask_b32 v%d, 0, v%d, s[42:43]' % (t1, t1))])
    for e in range(2):
        a.run([I('v_cndmask_b32 v%d, 0, v%d, s[%d:%d]' % (AM + 16 + 4 * e + i, t0 + e, BM[i], BM[i] + 1)) for i in range(4)])
    only_older(a, fdma([1], [2, 3]), 'L_B_nf3')
    a.run(fdma([1], [0, 1]))
    if opt('bbar', 1): a.add('s_barrier')
    a.run(B_gather(G0, 0, 0))
    a.run([I('v_lshlrev_b32 v%d, 16, v%d' % (lS + 1, lS + 1)),
           I('v_cndmask_b32 v%d, 0, v%d, s[40:41]' % (t0, lS)), I('v_cndmask_b32 v%d, 0, v%d, s[40:41]' % (t1, lS + 1)),
           I('v_sub_u32 v%d, v%d, v%d' % (lS, lS, t0)), I('v_sub_u32 v%d, v%d, v%d' % (lS + 1, lS + 1, t1))])
    for e in range(2):
        a.run([I('v_cndmask_b32 v%d, 0, v%d, s[%d:%d]' % (AM + 4 * e + i, t0 + e, BM[i], BM[i] + 1)) for i in range(4)])
        a.run([I('v_cndmask_b32 v%d, 0, v%d, s[%d:%d]' % (AM + 8 + 4 * e + i, lS + e, BM[i], BM[i] + 1)) for i in range(4)])
    a.run([I('v_lshlrev_b32 v%d, 16, v%d' % (t0, lK0)), I('v_lshlrev_b32 v%d, 16, v%d' % (lD, lD)), I('v_and_b32 v%d, 0xffff0000, v%d' % (lK0, lK0)),
           I('v_add_f32 v%d, v%d, v%d' % (t0, t0, lD)), I('v_cvt_pk_bf16_f32 v%d, v%d, v%d' % (t0, t0, lK0)),
           I('v_cndmask_b32 v%d, 0, v%d, s[56:57]' % (QB + 1, t0))])
    a.run(stamp(2))
    def tload(wait=True):
        o = ([WAITTAG('flt')] if wait else []) + [I('ds_write_b32 v%d, v%d' % (QB, QB + 1))]
        for r in RORD:
            for p in range(4): o += tB_load(p, r)
        return o
    Go, Gy = Grp(1), Grp(0)
    if opt('dbg', 0) == 1: a.run([WAITTAG('flt')] + stamp(1))
    a.run(tload())
    if opt('dbg', 0) == 1: a.run(stamp(2))
    a.run(B_kv(G0, 0, 0, prio=False))
    a.run(stamp(3))
    assert not a.vm
    Go.vm = []
    a.run([I('s_cmp_eq_u32 s%d, 0' % sGrp), I('s_cbranch_scc1 L_B_pj')])
    a.run(B_gather(Gy, 2, 1))
    Gy.vm = list(a.vm)
    a.run(['L_B_pj:'])
    a.run([WAIT(lg=0), I('s_barrier')])
    a.run(stamp(4))
    def wb(h): return wb1('B', h) if str(h) in OPT.get('wbB', '') else []
    fo, fy = 6 + Go.g, 6 + Gy.g
    if opt('bs', 1) == 0:
      OPT.setdefault('mid', '0,0,0,0')
      S = {
        0: lambda G: fdma([0], [2, 3]) + B_gather(G, 3, 0) + fdma([1], [2, 3]) + B_kv(G, 2, 1) + B_gather(G, 4, 1) + B_kv(G, 3, 0) + B_q(G, 0, QB) + [WAITTAG('flt')],
        1: lambda G: B_gather(G, 5, 0) + B_gather(G, 7, 1) + B_q(G, 1, QB) + B_kv(G, 5, 0),
        2: lambda G: B_gather(G, 6, 0) + B_kv(G, 4, 1) + out_unit('B', G, 0, QB) + B_q(G, 2, acc(0)) + B_q(G, 4, QB),
        3: lambda G: B_q(G, 3, acc(2)) + out_unit('B', G, 1, QB) + B_q(G, 5, acc(3)) + B_kv(G, 7, 1) + B_q(G, fo, acc(1)),
        4: lambda G: B_q(G, fy, acc(1)) + B_kv(G, 6, 0) + out_unit('B', G, 2, acc(0)),
        5: lambda G: out_unit('B', G, 3, acc(2)),
        6: lambda G: out_unit('B', G, 4, QB),
        7: lambda G: out_unit('B', G, 5, acc(3)),
      }
    else:
      OPT.setdefault('mid', '0,0,0,0')
      def hook(a_):
          vm = a_.vm; a_.vm = Go.vm
          a_.run([I('s_cmp_lg_u32 s%d, 0' % sGrp), I('s_cbranch_scc1 L_B_hk')])
          a_.run(B_gather(Go, 4, 1))
          a_.run(['L_B_hk:'])
          Go.vm = a_.vm; a_.vm = vm
      if opt('hk', 90): MHOOK[('B', 0, opt('hk', 90))] = hook
      S = {
        0: lambda G: fdma([0], [2, 3]) + B_gather(G, 3, 0) + fdma([1], [2, 3]) + B_kv(G, 2, 1) + B_q(G, 0, QB) + B_kv(G, 3, 0) + [WAITTAG('flt')] + (B_gather(G, 6, 1) if opt('g6', 0) else []),
        1: lambda G: ([] if opt('hk', 90) else B_gather(G, 4, 1)) + B_gather(G, 5, 0) + B_kv(G, 4, 1) + B_gather(G, 7, 1) + B_q(G, 1, QB) + B_kv(G, 5, 0),
        2: lambda G: ([] if opt('g6', 0) else B_gather(G, 6, 1)) + out_unit('B', G, 0, QB) + B_q(G, 2, acc(0)) + B_q(G, 4, QB) + B_kv(G, 6, 1),
        3: lambda G: B_q(G, 3, acc(2)) + out_unit('B', G, 1, QB) + B_q(G, 5, acc(3)) + B_kv(G, 7, 1) + B_q(G, fo, acc(1)),
        4: lambda G: out_unit('B', G, 2, acc(0)) + B_q(G, fy, acc(1)),
        5: lambda G: out_unit('B', G, 3, acc(2)),
        6: lambda G: out_unit('B', G, 4, QB),
        7: lambda G: out_unit('B', G, 5, acc(3)),
      }
    def final(Go, Gy):
        def need(G):
            n = None
            for i, (r, t) in enumerate(G.vm):
                if ('v', acc(1)) in r: n = len(G.vm) - 1 - i
            return n
        ns = [n for n in (need(Go), need(Gy)) if n is not None]
        a.vm = []; a.hist = []
        if ns: a.add('s_waitcnt vmcnt(%d)' % min(ns))
        a.run(out_unit('B', Go, 6 + Go.g, acc(1), OT=64))
    pingpong(a, 'B', Go, Gy, S, final, [[0], [1], [2], [3]])
    a.run(stamp_out()); a.run(probe_end('B'))
    a.add('s_endpgm')

def A_gather(G, c, st=None):
    if st is None: st = c & 3
    o = adv(vG, (c - G.gc) * 0x80000); G.gc = c
    for j in range(4):
        o.append(I('global_load_dword v%d, v%d, %s offset:%d' % (A_STG + 4 * st + j, vG, ptr(P_U), (j - 2) * 2048)))
    return o

def A_sig(G, c, st=None):
    if st is None: st = c & 3
    s = A_STG + 4 * st; t = SIGT
    o = []
    assert c <= G.wc
    for e in range(2):
        sel = 's48' if e == 0 else 's49'
        o += [I('v_perm_b32 v%d, v%d, v%d, %s' % (t + 2 * e, s + 2, s + 3, sel)),
              I('v_perm_b32 v%d, v%d, v%d, %s' % (t + 2 * e + 1, s, s + 1, sel)),
              I('ds_write_b64 v%d, %s offset:%d' % (vRw, vr(t + 2 * e, 2), e * A_RS + 512 * (G.wc - c)))]
    return o
def A_wset(G, c):
    o = adv(vRw, -512 * (c - G.wc)); G.wc = c
    return o

class Ring:
    def __init__(self, l): self.l = list(l); self.i = 0
    def pop(self):
        x = self.l[self.i % len(self.l)]; self.i += 1; return x

def pcmul(d, x, y, conj=False):
    D, X, Y = vr(d, 2), vr(x, 2), vr(y, 2)
    if conj:
        return [I('v_pk_mul_f32 %s, %s, %s op_sel_hi:[0,1] neg_hi:[0,1]' % (D, X, Y)),
                I('v_pk_fma_f32 %s, %s, %s, %s op_sel:[1,1,0] op_sel_hi:[1,0,1]' % (D, X, Y, D))]
    return [I('v_pk_mul_f32 %s, %s, %s op_sel_hi:[0,1]' % (D, X, Y)),
            I('v_pk_fma_f32 %s, %s, %s, %s op_sel:[1,1,0] op_sel_hi:[1,0,1] neg_lo:[1,0,0]' % (D, X, Y, D))]

def zipper(*lists):
    out = []
    n = max(len(l) for l in lists)
    idx = [0] * len(lists)
    for i in range(n):
        for k, l in enumerate(lists):
            want = (len(l) * (i + 1) + n - 1) // n
            while idx[k] < want:
                out.append(l[idx[k]]); idx[k] += 1
    return out

def gen_A(a):
    RAW = 112
    a.run([I('s_lshl_b32 s%d, s3, 8' % sT0), I('v_lshl_add_u32 v16, v%d, 2, s%d' % (vLane, sT0)),
           ] + ([
           I('s_bfe_u32 s%d, s2, 0x1000%d' % (sT0, 13 - opt('tbit', 6))), I('s_lshl_b32 s%d, s%d, 3' % (sT0, sT0)), I('s_add_u32 s%d, s%d, s%d' % (sT0, sT0, sSub)),
           I('s_lshl_b32 s%d, s%d, 16' % (sT0, sT0)),
           I('s_and_b32 s%d, s%d, 0x%x' % (sT1, sCh0, 0x1c0 if opt('cmap', 0) else 0x380)), I('s_lshl_b32 s%d, s%d, 1' % (sT1, sT1)), I('s_add_u32 s%d, s%d, s%d' % (sT0, sT0, sT1)),
           I('v_lshrrev_b32 v%d, 4, v0' % vP), I('v_lshl_add_u32 v%d, v%d, 11, s%d' % (vP, vP, sT0)),
           I('v_and_b32 v13, 8, v0'), I('v_lshl_add_u32 v%d, v13, %d, v%d' % (vP, 7 if opt('cmap', 0) else 4, vP)),
           ] if not opt('pfx', 0) else [
           I('s_lshl_b32 s%d, s%d, 17' % (sT0, sSub)), I('s_xor_b32 s%d, s%d, 64' % (sT1, sCh0)), I('s_lshl_b32 s%d, s%d, 1' % (sT1, sT1)), I('s_add_u32 s%d, s%d, s%d' % (sT0, sT0, sT1)),
           I('v_lshrrev_b32 v%d, 3, v0' % vP), I('v_lshl_add_u32 v%d, v%d, 11, s%d' % (vP, vP, sT0)),
           ]) + [
           WAIT(lg=0)])
    a.run(stamp(1))
    a.run([I('global_load_ushort v%d, v17, %s' % (RAW + 6, ptr(P_LDT)))])
    for j in range(6):
        a.add(I('global_load_dword v%d, v16, %s' % (RAW + j, ptr(1 + j))))
    a.run([I('global_load_ushort v%d, v17, %s' % (RAW + 7, ptr(P_DSK)))])
    PMAP = {'u': P_U, 'k': P_K, 'v': P_V, 'q': P_Q}
    PL = lambda z: [(PMAP[z[i]], int(z[i + 1])) for i in range(0, len(z), 2)]
    PF = lambda z: [pf('global_load_dword v%d, v%d, %s' % (DUMMY, vP + Q, ptr(t))) for t, Q in PL(z)]
    if opt('pf0late', 0) == 0: a.run(PF(OPT.get('pf0', 'k0v0')))
    a.run([I('v_add_u32 v%d, 0x100000, v%d' % (vP + 1, vP)), I('v_add_u32 v%d, 0x200000, v%d' % (vP + 2, vP)), I('v_add_u32 v%d, 0x300000, v%d' % (vP + 3, vP))])
    a.run(gather_addr(12, 13, 14))
    a.run([I('s_mul_i32 s%d, s%d, %d' % (sBlk, sW, A_SS)), I('s_add_u32 s%d, s%d, %d' % (sBlk, sBlk, A_S0)),
           I('v_mul_u32_u24 v14, %d, v13' % (2 * A_RS)),
           I('v_lshlrev_b32 v12, 3, v12'), I('v_sub_u32 v14, v14, v12'),
           I('s_lshl_b32 s%d, s%d, 7' % (sT0, sWr)), I('s_sub_u32 s%d, %d, s%d' % (sT0, 504 + 7 * 512, sT0)),
           I('v_add_u32 v%d, s%d, v14' % (vRw, sT0))])
    if opt('pf0late', 0) == 1: a.run(PF(OPT.get('pf0', 'k0v0')))
    m, g16, t0, t1, t2 = 76, 77, 78, 79, 75
    vK, vK1, vGa, vGe, vSw = 80, 81, 82, 83, 84
    a.run(lane_consts('A', t0))
    a.run([I('s_mov_b32 s48, 0x05040100'), I('s_mov_b32 s49, 0x07060302'), I('s_mov_b32 m0, s%d' % sBlk),
           I('v_and_b32 v%d, 15, v%d' % (m, vLane)),
           I('v_and_b32 v%d, 48, v%d' % (g16, vLane)),
           I('v_lshl_add_u32 v%d, v%d, 1, v%d' % (t0, m, g16)), I('v_add_u32 v%d, 2, v%d' % (t0, t0)),
           I('v_and_b32 v%d, 2, v%d' % (t1, t0)), I('v_mul_u32_u24 v%d, %d, v%d' % (t1, (A_KE1 - 2) // 2, t1)),
           I('v_add3_u32 v%d, v%d, v%d, s%d' % (vA1, t0, t1, sBlk)), I('v_add_u32 v%d, 1024, v%d' % (vA1b, vA1)),
           I('v_lshl_add_u32 v%d, v%d, 1, s%d' % (vSw, vLane, sBlk)),
           I('v_mov_b32 v%d, 0x3f80' % t0), I('s_mov_b32 vcc_hi, 0')])
    tabs = [(BD9, 20, 28), (BD7, 21, 27), (BD5, 22, 26), (BD3, 19, 21), (T32, 19, 20), (M16, 16, 18)]
    for k, (reg, lo, hi) in enumerate(tabs):
        a.run([I('s_mov_b32 vcc_lo, 0x%x' % (((1 << (hi + 1)) - 1) ^ ((1 << lo) - 1))),
               I('v_cndmask_b32 v%d, 0, v%d, vcc' % (88 + k, t0)) if k < 4 else I('v_cndmask_b32_e64 v%d, 0, -1, vcc' % (88 + k))])
    for k in range(6):
        a.run([I('ds_write_b16 v%d, v%d offset:%d' % (vSw, 88 + k, 128 * k)), I('ds_write_b16 v%d, v%d offset:%d' % (vSw, 88 + k, A_KE1 - 2 + 128 * k))])
    for k, (reg, lo, hi) in enumerate(tabs): a.run(rd2(reg, vA1, 32 * k))
    RS = 288
    R2, R1, C1 = 0, 8, 21
    a.run([I('ds_write_addtid_b32 v%d offset:%d' % (t0, R1 * RS)),
           I('s_mul_i32 s%d, s%d, %d' % (sT0, sW, A_RS)), I('s_add_u32 s%d, s%d, 480' % (sT1, sT0)),
           I('v_lshlrev_b32 v%d, 5, v%d' % (t1, m)), I('v_sub_u32 v%d, v%d, v%d' % (t1, g16, t1)),
           I('v_add_u32 v%d, s%d, v%d' % (vU, sT1, t1)),
           I('v_mov_b32 v92, 0'), I('v_mov_b32 v93, 0'), I('v_mov_b32 v94, 0'), I('v_mov_b32 v95, 0'),
           I('v_min_u32 v%d, 29, v%d' % (t1, vLane)), I('v_lshl_add_u32 v%d, v%d, 4, s%d' % (t1, t1, sT0)),
           I('ds_write_b128 v%d, v[92:95] offset:4096' % t1),
           I('v_lshlrev_b32 v%d, 2, v%d' % (t2, m)), I('v_sub_u32 v%d, v%d, v%d' % (t1, t2, g16)),
           I('s_add_u32 s%d, s%d, %d' % (sT0, sBlk, A_HA + 52)), I('v_add_u32 v%d, s%d, v%d' % (vHa, sT0, t1)),
           I('v_mul_u32_u24 v%d, %d, v%d' % (t1, RS, m)), I('v_add3_u32 v%d, v%d, v%d, s%d' % (vK, t1, g16, sBlk)),
           I('s_mov_b32 s%d, 0xcbaaa988' % sT0), I('s_mov_b32 s%d, 0xa9875421' % sT1),
           I('v_bfe_u32 v%d, s%d, v%d, 4' % (t1, sT0, t2)), I('v_min_u32 v%d, v%d, v%d' % (t1, t1, m)),
           I('v_mul_u32_u24 v%d, %d, v%d' % (t1, RS, t1)), I('v_add3_u32 v%d, v%d, v%d, s%d' % (vK1, t1, g16, sBlk)),
           I('v_bfe_u32 v%d, s%d, v%d, 4' % (t1, sT1, t2)), I('v_and_b32 v%d, 8, v%d' % (t0, m)),
           I('v_lshl_add_u32 v%d, v%d, 1, v%d' % (t1, t0, t1)), I('v_lshrrev_b32 v%d, 1, v%d' % (t0, g16)),
           I('v_lshl_add_u32 v%d, v%d, 6, v%d' % (t1, t1, t0)), I('v_add_u32 v%d, s%d, v%d' % (vGe, sBlk, t1)),
           I('v_and_b32 v%d, 8, v%d' % (t0, t0)), I('v_lshl_add_u32 v%d, v%d, 4, v%d' % (t0, m, t0)),
           I('v_and_b32 v%d, 32, v%d' % (t1, vLane)), I('v_lshl_add_u32 v%d, v%d, 4, v%d' % (t0, t1, t0)),
           I('v_add_u32 v%d, s%d, v%d' % (vGa, sBlk, t0))])
    GA = ACC
    if opt('ffpf', 0):
        a.run([I('s_lshr_b32 s%d, s%d, 1' % (sT0, sW)), I('s_add_u32 s%d, s%d, s%d' % (sT0, sT0, sCh0)), I('s_lshl_b32 s%d, s%d, 2' % (sT0, sT0)),
               I('s_and_b32 s%d, s%d, 1' % (sT1, sW)), I('s_add_u32 s%d, s%d, s%d' % (sT0, sT0, sT1)), I('s_add_u32 s%d, s%d, 2' % (sT0, sT0)),
               I('s_lshl_b32 s%d, s%d, 10' % (sT0, sT0)), I('v_lshl_add_u32 v%d, v%d, 4, s%d' % (t0, vLane, sT0)),
               pf('global_load_dword v%d, v%d, %s' % (DUMMY, t0, ptr(P_SK)))])
    a.run(PF(OPT.get('pf1', 'k1v1')))
    a.run(stamp(2))
    c12, dt = 72, 74
    P, E, PW, X, Y, CV, FR = 128, 136, 154, 160, 184, 64, 192
    za, bb, cc = P, P + 2, P + 4
    e = lambda k: E + 2 * k
    pw = lambda k: PW + 2 * k
    x = lambda k: X + 2 * k
    y = lambda b: Y + 2 * (b & 3)
    def setup(hi):
        o = []
        for j in range(6):
            o.append(I('v_and_b32 v%d, 0xffff0000, v%d' % (P + j, RAW + j)) if hi else I('v_lshlrev_b32 v%d, 16, v%d' % (P + j, RAW + j)))
        o += [I('v_mul_f32 v%d, v%d, v%d' % (za, za, c12)), I('v_mul_f32 v%d, v%d, v%d' % (za + 1, za + 1, c12 + 1)),
              I('v_mul_f32 v134, 0x43800000, v%d' % za), I('v_mul_f32 v135, 0x43800000, v%d' % (za + 1)),
              I('v_fract_f32 v%d, v%d' % (za + 1, za + 1)), I('v_exp_f32 v%d, v%d' % (za, za)), I('v_fract_f32 v135, v135'),
              I('v_cos_f32 v%d, v%d' % (e(1), za + 1)), I('v_sin_f32 v%d, v%d' % (e(1) + 1, za + 1)),
              I('v_exp_f32 v134, v134'),
              I('v_mul_f32 v%d, v%d, v%d' % (bb, bb, dt)), I('v_mul_f32 v%d, v%d, v%d' % (bb + 1, bb + 1, dt)),
              I('v_cos_f32 v%d, v135' % pw(1)), I('v_sin_f32 v%d, v135' % (pw(1) + 1)),
              I('v_mul_f32 v%d, v%d, v%d' % (e(1), e(1), za)), I('v_mul_f32 v%d, v%d, v%d' % (e(1) + 1, e(1) + 1, za)),
              I('v_mul_f32 v%d, v%d, v134' % (pw(1), pw(1))), I('v_mul_f32 v%d, v%d, v134' % (pw(1) + 1, pw(1) + 1))]
        return o
    a.run([I('v_lshlrev_b32 v%d, 16, v%d' % (RAW + 6, RAW + 6)),
           I('v_mul_f32 v%d, 0x3fb8aa3b, v%d' % (RAW + 6, RAW + 6)),
           I('v_exp_f32 v%d, v%d' % (RAW + 6, RAW + 6)),
           I('s_mov_b32 s52, 0'), I('s_mov_b32 vcc_lo, 1'),
           I('v_cvt_pk_bf16_f32 v%d, 0, v%d' % (dt, RAW + 6)),
           I('v_mul_f32 v%d, 0x3fb8aa3b, v%d' % (c12, dt)),
           I('v_mul_f32 v%d, 0.15915494, v%d' % (c12 + 1, dt))])
    a.run(setup(True))
    a.run([I('v_lshlrev_b32 v%d, 16, v%d' % (RAW + 7, RAW + 7)), I('v_cndmask_b32 v%d, 0, v%d, vcc' % (RAW + 7, RAW + 7))])
    if opt('kprio', 2) >= 2: a.add('s_setprio 1')
    if opt('kbar', 0): a.add('s_barrier')
    a.run(stamp(11))
    a.run([WAIT(lg=0), 'L_kgen:'])
    a.vm = []
    GL = Grp(0); GL.wc = 0
    cvr = Ring(list(range(CV, CV + 8)) + list(range(52, 60)))
    def put(v, row):
        t = cvr.pop()
        return [I('v_cvt_pk_bf16_f32 v%d, v%d, v%d' % (t, v, v + 1)), I('ds_write_addtid_b32 v%d offset:%d' % (t, row * RS))]
    def rdt(ti, row):
        return [I('ds_read_b128 %s, v%d offset:%d' % (vr(FR + 16 * s_ + 4 * ti, 4), vK1 if ti == 0 else vK, row * RS + 64 * s_)) for s_ in range(4)]
    y0 = [I('v_pk_mul_f32 %s, %s, %s op_sel_hi:[0,1] neg_hi:[0,1]' % (vr(y(0), 2), vr(cc, 2), vr(bb, 2))),
          I('v_pk_fma_f32 %s, %s, %s, %s op_sel:[1,1,0] op_sel_hi:[1,0,1] neg_lo:[1,0,0] neg_hi:[1,0,0]' % (vr(y(0), 2), vr(cc, 2), vr(bb, 2), vr(y(0), 2)))]
    first = zipper(pcmul(e(2), e(1), e(1)) + pcmul(e(4), e(2), e(2)) + pcmul(e(8), e(4), e(4)),
                   y0 + pcmul(pw(2), pw(1), pw(1)))
    colj = [(pcmul(y(b), y(b - 1), e(8), conj=True) if b else [], y(b), C1 + b) for b in range(32)]
    J = lambda d, p_, q_, row: (pcmul(d, p_, q_), d, row)
    rowj = [([], e(1), R1 + 1), ([], e(2), R1 + 2), ([], e(4), R1 + 4), ([], pw(1), R1 + 8),
            J(e(3), e(2), e(1), R1 + 3), J(e(5), e(4), e(1), R1 + 5), J(e(6), e(4), e(2), R1 + 6), J(e(7), e(4), e(3), R1 + 7),
            J(x(0), pw(1), e(2), R1 + 9), J(x(1), pw(1), e(4), R1 + 10), J(x(2), pw(1), e(6), R1 + 11), J(x(3), pw(1), e(8), R1 + 12),
            J(x(4), pw(2), e(4), R2 + 0), J(x(6), pw(2), e(8), R2 + 2), J(x(5), x(4), pw(1), R2 + 1), J(x(7), x(6), pw(1), R2 + 3),
            J(x(8), x(4), x(4), R2 + 4), J(x(9), x(8), pw(1), R2 + 5), J(x(10), x(8), pw(2), R2 + 6), J(x(11), x(9), pw(2), R2 + 7)]
    jobs = zipper(colj[:24], rowj) + colj[24:]
    o = list(first)
    pend = []; wq = []; done = set()
    KB = opt('kb', 4)
    need = [(1, C1, range(C1, C1 + 16)), (0, R1, range(R1 + 1, R1 + 13)), (3, R2, range(R2, R2 + 8)), (2, C1 + 16, range(C1 + 16, C1 + 32))]
    def flush():
        r = [w for w, _ in wq]
        done.update(x_ for _, x_ in wq); wq.clear()
        for it in list(need):
            if all(z in done for z in it[2]):
                r += rdt(it[0], it[1]); need.remove(it)
        return r
    for (mul, v, row) in jobs:
        if mul: o += [mul[0]] + pend + [mul[1]]
        else: o += pend
        if len(wq) >= KB: o += flush()
        c_, w_ = put(v, row)
        pend = [c_]; wq.append((w_, row))
    o += pend + flush()
    assert not need
    GL.gc = 0
    blocks = [(opt('kp0', 40), PF(OPT.get('pf2', 'u0u1')), A_gather(GL, 0, 0)),
              (opt('kp1', 130), PF(OPT.get('pf3', 'k2v2')), A_gather(GL, 2, 1))]
    if opt('nokv', 0): blocks = []
    if opt('kg_now', 0): o = [z for z in o if z.kind != 'dsw']
    if opt('kg_nor', 0): o = [z for z in o if z.kind != 'dsr']
    prev = 0
    for bi, (cut, pa, pb) in enumerate(blocks):
        a.run(o[prev:cut]); prev = cut
        a.run([I('s_cmp_lg_u32 s52, 0'), I('s_cbranch_scc1 L_kg_b%d' % bi)])
        for z in pa: a.out.append('    ' + z.text)
        a.run([I('s_branch L_kg_j%d' % bi), 'L_kg_b%d:' % bi])
        a.run(pb)
        a.run(['L_kg_j%d:' % bi])
    a.run(o[prev:])
    def mms(init):
        mm = []
        for half in range(2):
            for s_ in range(4):
                f = FR + 16 * s_; z = init and s_ == 0
                g0, g1 = GA + 4 * half, GA + 8 + 4 * half
                mm += [MF(g0, f, f + 4 + 4 * half, None if z else g0), MF(g1, f + 4 + 4 * half, f + 12, None if z else g1)]
        return mm if not opt('kg_nom', 0) else []
    a.run([I('s_cmp_lg_u32 s52, 0'), I('s_cbranch_scc1 L_kg_end')])
    lg_ = list(a.lg); h_ = list(a.hist)
    o, left = interleave(mms(True), setup(False), rate=2)
    a.run(o + left)
    if opt('st12', 0) == 0: a.run(stamp(12))
    if opt('kprio', 2) == 1:
        a.run([I('s_cmp_eq_u32 s%d, 0' % sGrp), I('s_cbranch_scc1 L_kg_np'), I('s_setprio 1'), 'L_kg_np:'])
    if opt('kprio', 2) == 2:
        a.run([I('s_cmp_lg_u32 s%d, 0' % sGrp), I('s_cbranch_scc1 L_kg_np'), I('s_setprio 0'), 'L_kg_np:'])
    if opt('kprio', 2) == 3:
        a.run([I('s_setprio 0')])
    a.run([I('s_mov_b32 s52, 1'), I('s_branch L_kgen'), 'L_kg_end:'])
    a.lg = lg_; a.hist = h_
    if opt('st12', 0) == 1: a.run(stamp(12))
    GL.wc = 2
    zw = [I('ds_write_addtid_b32 v92 offset:%d' % z) for z in (0, 1024, 2256, 2528)]
    o, left = interleave(mms(False), PF(OPT.get('pf4', 'k3v3q0u2')) + adv(vRw, -1024) + A_sig(GL, 0, 0) + zw, rate=2)
    a.run(o + left)
    if opt('kprio', 2): a.add('s_setprio 0')
    a.run(stamp(3))
    Go, Gy = Grp(0), Grp(1)
    Go.gc = Go.wc = 2; Gy.gc = Gy.wc = 3
    def tbuild():
        C = 112
        o = [I('s_nop 4'), I('v_add_f32 v%d, v%d, v%d' % (GA, GA, RAW + 7))]
        o += [I('v_cvt_pk_bf16_f32 v%d, v%d, v%d' % (C + k, GA + 2 * k, GA + 2 * k + 1)) for k in range(8)]
        o += [I('v_cvt_pk_bf16_f32 v%d, v%d, v%d' % (C + 8 + ct, GA + 4 * ct + 1, GA + 4 * ct + 2)) for ct in range(2)]
        for ct in range(2):
            o += [I('ds_write_b64 v%d, %s offset:%d' % (vGa, vr(C + 2 * ct, 2), 256 * ct + 32)),
                  I('ds_write_b16 v%d, v%d offset:%d' % (vGa, C + 2 * ct, 256 * ct + A_KE1 + 30)),
                  I('ds_write_b32 v%d, v%d offset:%d' % (vGa, C + 8 + ct, 256 * ct + A_KE1 + 32)),
                  I('ds_write_b16_d16_hi v%d, v%d offset:%d' % (vGa, C + 2 * ct + 1, 256 * ct + A_KE1 + 36))]
        o += [I('ds_write_b64 v%d, %s offset:%d' % (vGe, vr(C + 4 + 2 * ct, 2), A_HA + 32 * ct)) for ct in range(2)]
        o += [I('v_readlane_b32 s50, v%d, 63' % (C + 3)), I('v_readlane_b32 s51, v%d, 51' % (C + 7))]
        o += rd2(T16, vA1b, 0)
        for r in RORD[:A_PRE]: o += tA_load(r)
        o += [I('s_pack_hh_b32_b16 s50, s50, s50'), I('s_pack_hh_b32_b16 s51, s51, s51')]
        o += [I('v_and_b32 v%d, s51, v%d' % (T32 + i, T32 + i)) for i in range(4)]
        o += [I('v_and_or_b32 v%d, v%d, s50, v%d' % (T16 + i, M16 + i, T16 + i)) for i in range(4)]
        return o
    a1_ = opt('a1', 1)
    if a1_:
        tb = tbuild()
        if opt('dbg', 0) == 3:
            k_ = [i for i, z in enumerate(tb) if z.mn.startswith('v_readlane')][0]
            a.run(tb[:k_]); a.run(stamp(1)); a.run(tb[k_:]); a.run(stamp(2)); a.run(A_sig(GL, 2, 1)); a.run(stamp(11))
        else:
            a.run(tb); a.run(A_sig(GL, 2, 1))
    else:
        h_ = list(a.hist); lg_ = list(a.lg)
        a.run([I('s_cmp_lg_u32 s%d, 0' % sGrp), I('s_cbranch_scc1 L_A_pj')])
        a.run(tbuild())
        a.run(['L_A_pj:'])
        a.run(A_sig(GL, 2, 1))
    Go.vm = list(a.vm); Gy.vm = list(a.vm)
    a.run([I('s_waitcnt lgkmcnt(0)'), I('s_barrier')]); a.lg = []
    a.run(stamp(4))
    def PF2(z, g):
        qs_ = sorted(set(Q for _, Q in PL(z)))
        return PF(z) + [I('v_add_u32 v%d, %s, v%d' % (vP + Q, lit((16 if g == 0 else -16) * 2048 * (2 if opt('pfx', 0) else 1)), vP + Q)) for Q in qs_] + PF(z)
    def wb(h): return wb1('A', h) if str(h) in OPT.get('wbA', '') else []
    S = {
        0: lambda G: ([] if a1_ else tbuild()) + A_gather(G, 4, 0) + A_gather(G, 5, 1) + PF2(OPT.get('pf5', 'q1u3q2q3'), 1) + A_wset(G, 5) + A_sig(G, 4, 0) + A_sig(G, 5, 1),
        1: lambda G: A_gather(G, 6, 0) + A_gather(G, 7, 1) + [BARRIER()] + out_unit('A', G, 0, None) + out_unit('A', G, 1, None, OT=64) + A_wset(G, 7) + A_sig(G, 6, 0) + A_sig(G, 7, 1),
        2: lambda G: out_unit('A', G, 2, None) + out_unit('A', G, 3, None, OT=64),
        3: lambda G: [],
        4: lambda G: out_unit('A', G, 4, None) + wb(4),
        5: lambda G: out_unit('A', G, 5, None) + wb(5),
    }
    def final(Go, Gy):
        a.vm = []; a.hist = []
        a.run(out_unit('A', Go, 6, None, OT=64))
    pingpong(a, 'A', Go, Gy, S, final, [[0], [2], [3]])
    a.run(stamp_out()); a.run(probe_end('A'))
    a.add('s_endpgm')

def main():
    hdr = open('cdna_kernels/%s.s.ref' % NAME).read().split('; Override launch')[0]
    a = Asm()
    a.raw(hdr.rstrip())
    a.raw('; @launch grid=(256,1,1) block=(512,1,1) lds=%d' % LDS_BYTES)
    a.raw('.amdgcn_target "amdgcn-amd-amdhsa--gfx950"\n.text\n.globl %s_kernel\n.p2align 8\n.type %s_kernel,@function\n%s_kernel:' % (NAME, NAME, NAME))
    if STAMP: a.run([I('s_memrealtime s[92:93]')])
    a.run(stamp(0))
    a.run([I('s_load_dwordx16 s[8:23], s[0:1], 0'), I('s_load_dwordx16 s[24:39], s[0:1], 64'),
           I('s_cmp_ge_u32 s2, 256'), I('s_cbranch_scc1 L_exit'),
           I('v_lshrrev_b32 v12, 6, v0'), I('v_and_b32 v%d, 63, v0' % vLane),
           I('s_bfe_u32 s%d, s2, 0x30003' % sSub),
           I('v_readfirstlane_b32 s%d, v12' % sW),
           ] + ([
           I('s_getpc_b64 s[40:41]'), 'L_pc:', I('s_and_b32 s42, s2, 0xf8'), I('s_add_u32 s42, s42, s%d' % sW), I('s_lshl_b32 s42, s42, 7'),
           I('s_min_u32 s42, s42, L_exit-L_pc'), I('s_add_u32 s40, s40, s42'), I('s_addc_u32 s41, s41, 0'),
           I('v_mov_b32 v14, s40'), I('v_mov_b32 v15, s41'), pf('global_load_dword v62, v[14:15], off')] if opt('cpf', 1) else []) + [
           I('s_lshl_b32 s%d, s2, 2' % sT0), I('s_lshr_b32 s%d, 0x%s, s%d' % (sT0, OPT.get('xmap', '76043215'), sT0)),
           I('s_and_b32 s%d, s%d, 7' % (sT0, sT0)), I('s_lshl_b32 s%d, s%d, %d' % (sT0, sT0, 6 if opt('cmap', 0) else 7)),
           I('s_bfe_u32 s%d, s2, 0x1000%d' % (sT1, 13 - opt('tbit', 6))), I('s_lshl_b32 s%d, s%d, %d' % (sT1, sT1, 9 if opt('cmap', 0) else 6)),
           I('s_add_u32 s%d, s%d, s%d' % (sCh0, sT0, sT1)), I('s_lshl_b32 s%d, s%d, 3' % (sT0, sSub)), I('s_add_u32 s%d, s%d, s%d' % (sCh0, sCh0, sT0)),
           I('s_add_u32 s3, s%d, s%d' % (sCh0, sW)),
           I('s_lshr_b32 s%d, s%d, 2' % (sGrp, sW)),
           I('s_mov_b32 s%d, s%d' % (sWr, sW)),
           I('s_lshl_b32 s%d, s3, 1' % sT1), I('v_mov_b32 v17, s%d' % sT1),
           I('s_bitcmp1_b32 s2, %d' % opt('tbit', 6)), I('s_cbranch_scc%d L_A' % opt('tpol', 1))])
    sm0, smr0, h0 = a.smem, set(a.smem_regs), list(a.hist)
    early_B(a)
    vmB = list(a.vm)
    a.run([I('s_branch L_B'), 'L_A:'])
    a.vm, a.lg, a.hist = [], [], h0
    a.smem, a.smem_regs = sm0, smr0
    sm, smr = a.smem, set(a.smem_regs)
    gen_A(a)
    a.vm, a.lg, a.hist = vmB, [], []
    a.smem, a.smem_regs = False, set()
    a.raw('.p2align 6')
    gen_B(a)
    a.raw('L_exit:\n    s_endpgm')
    a.raw('''.section .rodata,"a"
.p2align 6
.amdhsa_kernel %s_kernel
  .amdhsa_next_free_vgpr 256
  .amdhsa_next_free_sgpr 102
  .amdhsa_accum_offset 256
  .amdhsa_group_segment_fixed_size 0
  .amdhsa_kernarg_size 144
  .amdhsa_user_sgpr_count 2
  .amdhsa_user_sgpr_kernarg_segment_ptr 1
  .amdhsa_system_sgpr_workgroup_id_x 1
.end_amdhsa_kernel''' % NAME)
    out = OPT.get('out', 'cdna_kernels/%s.s' % NAME)
    open(out, 'w').write(a.text())
    print(a.stats, file=sys.stderr)

if __name__ == '__main__':
    main()
```

```python
import sys, struct
from asmlib import *

NAME = 'concat_heads__ssm_conv_s4__ssm_conv_h3__prompt'
STAMP = '--stamp' in sys.argv
OPT = dict(a.split('=') for a in sys.argv[1:] if '=' in a)
def opt(k, d): return type(d)(OPT.get(k, d))

I = Ins
def vr(a, n=1): return 'v%d' % a if n == 1 else 'v[%d:%d]' % (a, a + n - 1)
def flit(x): return '0x%08x' % struct.unpack('<I', struct.pack('<f', float(x)))[0]
def lit(x): return '0x%08x' % (x & 0xffffffff)

TRES, ACC, UB, TS = 128, 96, 80, 64
vT, vU, vRw, vYw, vTr, vG, vH, vQ, vO, vBp, vLane = 1, 2, 3, 4, 5, 6, 7, 8, 9, 10, 11
sW, sSub, sCh0, sWr, sBlk, sGrp = 4, 5, 6, 7, 44, 45
def ptr(i): return 's[%d:%d]' % (8 + 2 * i, 9 + 2 * i)
P_U, P_LDT, P_DSK, P_Q, P_K, P_V, P_SH, P_SK, P_SD, P_OUT = 0, 7, 8, 9, 10, 11, 12, 13, 14, 15
sT0, sT1 = 46, 47
TMP = 46
RORD = [0, 1, 2, 3, 4, 5, 6, 7]
def tres(p, r): return TRES + (p * 8 + r) * 4
def acc(c): return ACC + 4 * c

B_BLK, B_F1, B_R0, B_RS, B_Y, B_YS = 17616, opt('f1', 4224), 8464, 4576, 140928, 2112
vT2 = 0
A_RS, A_S0, A_SS, A_KE1, A_HA, A_Y = 4624, 36992, 15424, 1216, 2336, 4160
LDS_BYTES = 160384

PROBE = opt('probe', -1)
PTYPE = OPT.get('ptype', 'AB')
def stamp(k):
    if PROBE >= 0:
        if k == 0: return [I('s_memtime s[60:61]'), WAIT(lg=0)]
        if k == PROBE: return [I('s_memtime s[62:63]'), WAIT(lg=0)]
        return []
    if not STAMP: return []
    assert k < 14
    return [I('%s s[%d:%d]' % ('s_memrealtime' if opt('rt', 0) else 's_memtime', 64 + 2 * k, 65 + 2 * k)), WAIT(lg=0)]
def probe_end(typ):
    if PROBE < 0 or typ not in PTYPE: return []
    o = [I('s_waitcnt vmcnt(0) lgkmcnt(0)'), I('s_memtime s[56:57]'), WAIT(lg=0)]
    if PROBE == 100: o += [I('s_mov_b32 s58, 24000')]
    elif PROBE == 99: o += [I('s_sub_u32 s58, s56, s60')]
    else: o += [I('s_sub_u32 s58, s62, s60')]
    o += ['L_spin%s:' % typ, I('s_memtime s[54:55]'), WAIT(lg=0), I('s_sub_u32 s59, s54, s56'), I('s_cmp_lt_u32 s59, s58'), I('s_cbranch_scc1 L_spin%s' % typ)]
    return o
def stamp_out():
    if not STAMP: return []
    o = [I('s_waitcnt vmcnt(0) lgkmcnt(0)')] + stamp(13) + [I('s_memrealtime s[94:95]'),
         I('s_load_dwordx2 s[40:41], s[0:1], 136'),
         I('s_lshl_b32 s42, s2, 3'), I('s_add_u32 s42, s42, s%d' % sW), I('s_lshl_b32 s42, s42, 7'),
         I('v_mov_b32 v12, s42'), WAIT(lg=0)]
    for k in range(16):
        o += [I('v_mov_b32 v%d, s%d' % (14 + 2 * k, 64 + 2 * k)), I('v_mov_b32 v%d, s%d' % (15 + 2 * k, 65 + 2 * k)),
              I('global_store_dwordx2 v12, v[%d:%d], s[40:41] offset:%d' % (14 + 2 * k, 15 + 2 * k, 8 * k))]
    return o

def dst(k): return stamp(k) if opt('dbg', 0) else []
def nogap(l): return [x for x in l if not isinstance(x, GAP)]

def u_load(q, r, reg, extra=0):
    s = 8 * q - r
    return I('ds_read_b128 %s, v%d offset:%d' % (vr(reg, 4), vU, 64 * (56 - s) + extra))
def MF(d, x, y, c=None):
    return I('v_mfma_f32_16x16x32_bf16 %s, %s, %s, %s' % (vr(d, 4), vr(x, 4), vr(y, 4), '0' if c is None else vr(c, 4)))
def ymask(typ): return 1 if typ == 'B' else 3
def y_write(typ, Q, tmp):
    o = []
    for h in range(2):
        c = 2 * Q + h
        o += [I('v_cvt_pk_bf16_f32 v%d, v%d, v%d' % (tmp + 2 * h, acc(c), acc(c) + 1)),
              I('v_cvt_pk_bf16_f32 v%d, v%d, v%d' % (tmp + 2 * h + 1, acc(c) + 2, acc(c) + 3)),
              I('ds_write_b64 v%d, %s offset:%d' % (vYw, vr(tmp + 2 * h, 2), (Q & ymask(typ)) * 1024 + h * 512))]
    return o
def spread(mf, ops, first=0):
    out = list(mf[:first]); mf = mf[first:]
    n = len(mf); k = 0
    if n == 0: return out + ops
    for i, m in enumerate(mf):
        out.append(m)
        want = (len(ops) * (i + 1) + n - 1) // n
        while k < want:
            out.append(ops[k]); k += 1
    return out
def tB_load(p, r):
    t = 8 * p + r
    reg = tres(p, r) if p < 4 else TS + (p - 4) * 4
    if B_F1 == 4168:
        return [I('ds_read2_b64 %s, v%d offset0:%d offset1:%d' % (vr(reg, 4), vT if t < 32 else vT2, 8 * (t & 31), 8 * (t & 31) + 1))]
    return [I('ds_read_b64 %s, v%d offset:%d' % (vr(reg, 2), vT, 64 * t)),
            I('ds_read_b64 %s, v%d offset:%d' % (vr(reg + 2, 2), vT, 64 * t + 8))]

class Acc:
    def __init__(self): self.started = set()
    def mf(self, c, x, y):
        first = c not in self.started
        self.started.add(c)
        return MF(acc(c), x, y, None if first else acc(c))

vA1, vA1b, vHa, DUMMY = 7, 8, 0, 10
A_STG, vP, SIGT = 12, 20, 24
BD9, BD7, BD5, BD3, T32, M16 = 28, 32, 36, 40, 44, 48
XU = 52
HF, H3E, H3O, T16 = 192, 208, 220, 232
DT = [236, 240, 244, 248, 252, 64]

def emit_m(a, typ, ph, code, do_early, do_late, first):
    early = [int(z) for z in OPT.get('early' + typ, '8,8,10,10').split(',')][ph]
    mid = [int(z) for z in OPT.get('mid', '96,68,42,0').split(',')][ph] if typ == 'B' else (opt('amid', 60) if ph == 0 else 0)
    cnt = 0
    for x in code:
        if early == 0 and cnt == 0 and isinstance(x, Ins) and x.kind == 'mfma' and do_early:
            a.run([I('s_barrier'), I('s_setprio %d' % opt('mprio', 1))])
        a.run([x])
        if isinstance(x, Ins) and x.kind == 'mfma':
            cnt += 1
            if cnt == early and do_early:
                if first: a.run([I('s_cmp_eq_u32 s%d, 0' % sGrp), I('s_cbranch_scc1 L_%s_nb' % typ), I('s_barrier'), 'L_%s_nb:' % typ, I('s_setprio %d' % opt('mprio', 1))])
                else: a.run([I('s_barrier'), I('s_setprio %d' % opt('mprio', 1))])
            if (typ, ph, cnt) in MHOOK: MHOOK[(typ, ph, cnt)](a)
            if cnt == mid:
                wi = [len(a.lg) - 1 - i for i, (r, t) in enumerate(a.lg) if not r]
                if wi: a.wait(None, min(wi))
                if typ == 'A': assert sum('ds_write_b64 v%d,' % vYw in z for z in a.out) == 2
                a.run([I('s_cmp_eq_u32 s%d, 0' % sGrp), I('s_cbranch_scc1 L_%s_nm%d' % (typ, ph)), I('s_barrier'), 'L_%s_nm%d:' % (typ, ph)])
    a.run((stamp(2) if opt('dbg', 0) == 2 and first and do_late else []) + ([BARRIER()] if do_late else []))
    a.run([WAIT(lg=0)])
    if do_late: a.add('s_setprio %d' % opt('sprio', 0))

def with_y(typ, ph, allm, tmp, skip):
    idx = [i for i, x in enumerate(allm) if x.kind == 'mfma']
    ycut = idx[min(len(idx) - 1, skip - 1)] + 1
    o, left = interleave(allm[ycut:], y_write(typ, ph, tmp), rate=2)
    return allm[:ycut] + o + left

DEFER = {0: [], 1: [(5, 2), (5, 1)], 2: [(5, 2), (5, 1), (4, 3), (4, 2)], 3: [(5, 2), (5, 1), (4, 3)]}[opt('defer', 1)]
MHOOK = {}
def m_block_B(a, ph, ac, do_early, do_late, first):
    qs = [2 * ph, 2 * ph + 1]
    items = [(q, p) for q in qs for p in range(0, 8 - q) if (q, p) not in DEFER]
    if ph == 3:
        items = DEFER + items
        qs = sorted(set(q for q, p in items))
    nq = len(qs)
    stream = ph < 2
    if stream: ring, dist = [UB, UB + 8], 1
    elif nq == 2: ring, dist = [UB, UB + 8, TS, TS + 8], (3 if len(items) < 5 else 2)
    elif nq == 3: ring, dist = [TS, TS + 12, 36], 2
    else: ring, dist = [TS, UB, 36], 2
    ureg = lambda k, q: ring[k % len(ring)] + qs.index(q) * 4
    uld = lambda k: [u_load(q, RORD[k], ureg(k, q)) for q in qs] if k < 8 else []
    code = []
    for k in range(dist): code += uld(k)
    ps = list(range(4, 8 - 2 * ph)) if stream else []
    carry = []
    for p in ps: carry += tB_load(p, RORD[0])
    for k, r in enumerate(RORD):
        last = k == 7
        res = [it for it in items if it[1] < 4]
        st = [it for it in items if it[1] >= 4]
        if opt('zz', 1):
            res.sort(key=lambda it: (it[0] + it[1], it[0] if (it[0] + it[1]) & 1 else -it[0]))
            st.sort(key=lambda it: (it[1], it[0]))
        else:
            if last: res.sort(key=lambda it: (it[0] + it[1] > 2 * ph + 1, it[0] + it[1] if ph == 3 else 0, it[0], it[1]))
            st.sort(key=lambda it: (it[1], -it[0]))
        mres = [ac.mf(p + q, tres(p, r), ureg(k, q)) for q, p in res]
        ops = carry + uld(k + dist)
        step = spread(mres[:len(ops)], ops) + mres[len(ops):]
        pend = []
        for i, (q, p) in enumerate(st):
            step.append(ac.mf(p + q, TS + (p - 4) * 4, ureg(k, q)))
            if not last and (i + 1 == len(st) or st[i + 1][1] != p): pend += tB_load(p, RORD[k + 1])
            if pend: step.append(pend.pop(0))
        carry = pend
        if last: step = with_y('B', ph, step, ring[(k + 1) % len(ring)], (3 + opt('ydist', 3)) if ph < 3 else 99)
        code += step
    emit_m(a, 'B', ph, code, do_early, do_late, first)

def m_block_A(a, ph, ac, do_early, do_late, first):
    qs = (2 * ph, 2 * ph + 1)
    ring, dist = [UB, UB + 8, TS + 8], 2
    if ph == 3: ring, dist = [UB, UB + 8, TS, TS + 8], 3
    ureg = lambda k, q: ring[k % len(ring)] + (q - 2 * ph) * 4
    uld = lambda k: [u_load(q, RORD[k], ureg(k, q)) for q in qs] if k < 8 else []
    kinds = ([(BD7, BD9)] if ph < 2 else []) + [(BD5, BD5), (BD3, BD3)]
    xl = lambda f: [u_load(f, 0, XU), u_load(f, 0, XU + 4, extra=16)]
    def box():
        o = []
        for i, (b0, b1) in enumerate(kinds): o += [MF(DT[2 * i], XU, b0), MF(DT[2 * i + 1], XU + 4, b1)]
        return o
    def cvt():
        o = []
        for i in range(len(kinds)):
            o += [I('v_cvt_pk_bf16_f32 v%d, v%d, v%d' % (XU + 4 * i + j, DT[2 * i] + 3 - j, DT[2 * i + 1] + 3 - j)) for j in range(4)]
        return o
    def fin(f):
        o = []; z = XU
        if ph < 2:
            o += [ac.mf(4 + f + d, z, HF + 4 * d) for d in range(4 - f)]; z += 4
        for hf in (H3O, H3E):
            o += [ac.mf(f + d, z, hf + 4 * (d - 2)) for d in (2, 3, 4) if f + d <= 7]; z += 4
        return o
    code = uld(0) + (xl(qs[0]) if ph < 3 else [])
    for k in range(1, dist): code += uld(k)
    cq = []
    for k, r in enumerate(RORD):
        last = k == 7
        res = [(q, p) for q in qs for p in range(0, min(2, 8 - q))]
        if last: res.sort(key=lambda it: (it[0] + it[1] > 2 * ph + 1, it[0], it[1]))
        mres = [ac.mf(p + q, tres(p, r), ureg(k, q)) for q, p in res]
        if k == 0 and ph < 3: mres += [ac.mf(2 + q, T16, ureg(k, q)) for q in qs]
        if k == 0 and ph < 2: mres += [ac.mf(4 + q, T32, ureg(k, q)) for q in qs]
        step = spread(mres[:2], uld(k + dist)) + mres[2:]
        if cq:
            step, cq = interleave(step, cq, rate=2)
        if ph < 3:
            if k in (0, 4): step += box(); cq = [GAP(0)] + cvt()
            if k == 2: step += cq + fin(qs[0]) + xl(qs[1]); cq = []
            if k == 6: step += cq; cq = []
            if last: step += fin(qs[1])
        if last: step = with_y('A', ph, step, ring[(k + 1) % len(ring)], 3 + opt('ydist', 3))
        code += step
    emit_m(a, 'A', ph, code, do_early, do_late, first)

def rd2(reg, ad, d):
    return [I('ds_read2_b32 %s, v%d offset0:%d offset1:%d' % (vr(reg, 2), ad, d, d + 1)),
            I('ds_read2_b32 %s, v%d offset0:%d offset1:%d' % (vr(reg + 2, 2), ad, d + 2, d + 3))]
A_PRE = opt('apre', 2)
def tA_load(r):
    return rd2(tres(0, r), vA1, 16 * r) + rd2(tres(1, r), vA1, 16 * (8 + r))

def m_group0_A(a, ac):
    ring = [UB, UB + 8, TS + 8]
    ZS = [[60, 48, 68], [24, 12, 16]]
    ureg = lambda K, h: ring[K % 3] + 4 * h
    uld = lambda K: [u_load(2 * (K >> 3) + h, RORD[K & 7], ureg(K, h)) for h in range(2)]
    kinds = [(BD7, BD9), (BD5, BD5), (BD3, BD3)]
    xl = lambda f: [u_load(f, 0, XU), u_load(f, 0, XU + 4, extra=16)]
    def box():
        o = []
        for i, (b0, b1) in enumerate(kinds): o += [MF(DT[2 * i], XU, b0), MF(DT[2 * i + 1], XU + 4, b1)]
        return o
    def cvt(f):
        return [I('v_cvt_pk_bf16_f32 v%d, v%d, v%d' % (ZS[f & 1][i] + j, DT[2 * i] + 3 - j, DT[2 * i + 1] + 3 - j)) for i in range(3) for j in range(4)]
    def fin(f):
        z = ZS[f & 1]
        return ([ac.mf(f + d, z[1], H3O + 4 * (d - 2)) for d in (2, 3, 4)] + [ac.mf(f + d, z[2], H3E + 4 * (d - 2)) for d in (2, 3, 4)]
                + [ac.mf(4 + f + d, z[0], HF + 4 * d) for d in range(4 - f)])
    def step(K):
        ph, r = K >> 3, RORD[K & 7]
        o = [ac.mf(p + 2 * ph + h, tres(p, r), ureg(K, h)) for h in range(2) for p in range(2)]
        if (K & 7) == 0:
            o += [ac.mf(2 + 2 * ph + h, T16, ureg(K, h)) for h in range(2)] + [ac.mf(4 + 2 * ph + h, T32, ureg(K, h)) for h in range(2)]
        return o
    hl = []
    for d in range(3): hl += rd2(H3O + 4 * d, vHa, 48 + 16 * d)
    for d in range(3): hl += rd2(H3E + 4 * d, vHa, 16 * d)
    for d in range(4): hl += rd2(HF + 4 * d, vHa, 96 + 16 * d)
    seq = []
    def S_(K): return (lambda: step(K), uld(K + 2) if K + 2 < 16 else [], [])
    plan = [S_(0), ('box', 0), S_(1), S_(2), ('box', 1), S_(3), S_(4), S_(5), S_(6), S_(7), ('y', 0),
            S_(8), S_(9), S_(10), S_(11), S_(12), ('fin', 0), ('box', 2), ('fin', 1), S_(13), ('box', 3), ('fin', 2), S_(14), S_(15), ('y', 1), ('fin', 3)]
    code = uld(0) + xl(0) + uld(1)
    urgent, lazy, vq = [], [], []
    for r in range(A_PRE, 8): lazy += tA_load(RORD[r])
    lazy += hl
    issued = []
    def need(m):
        o = []
        for q in (urgent, lazy):
            idx = [i for i, l in enumerate(q) if l.wr & m.rd]
            if idx:
                o += q[:idx[-1] + 1]; del q[:idx[-1] + 1]
        idx = [i for i, v in enumerate(vq) if isinstance(v, Ins) and (v.wr & m.rd or v.rd & m.wr)]
        if idx:
            o += [v for v in vq[:idx[-1] + 1] if isinstance(v, Ins)]; del vq[:idx[-1] + 1]
        return o
    for it in plan:
        post_u, post_v = [], []
        if it[0] == 'box':
            ms = box(); post_v = [None, None] + cvt(it[1])
            if it[1] < 3: post_u = xl(it[1] + 1)
        elif it[0] == 'fin': ms = fin(it[1])
        elif it[0] == 'y':
            vq += [None, None, None] + y_write('A', it[1], 20); continue
        else:
            ms = it[0](); urgent += it[1]
        for m in ms:
            code += need(m) + [m]
            if urgent: code.append(urgent.pop(0))
            elif lazy: code.append(lazy.pop(0))
            for _ in range(2):
                if vq:
                    v = vq.pop(0)
                    if v is None: break
                    code.append(v)
        urgent += post_u; vq += post_v
    code += [v for v in vq if v is not None]
    assert not urgent and not lazy
    emit_m(a, 'A', 0, code, True, True, True)

def m_block(a, typ, ph, ac, do_early=True, do_late=True, first=False):
    assert not a.lg
    if typ == 'A' and ph == 0: m_group0_A(a, ac)
    else: (m_block_A if typ == 'A' else m_block_B)(a, ph, ac, do_early, do_late, first)

class Grp:
    def __init__(self, g):
        self.g = g; self.vm = []
        self.gc = g; self.qt = g; self.ot = g

def adv(reg, delta):
    return [I('v_add_u32 v%d, %s, v%d' % (reg, lit(delta), reg))] if delta else []

def out_unit(typ, G, t, qreg, OT=84):
    y = OT; t0 = OT + 4; res = OT + 6
    ys = B_YS if typ == 'B' else A_SS
    off = 512 + ((t >> 1) & ymask(typ)) * 1024 + ((t & 1) - G.g) * 512
    o = [I('ds_read_b64_tr_b16 %s, v%d offset:%d' % (vr(y, 2), vTr, off)),
         I('ds_read_b64_tr_b16 %s, v%d offset:%d' % (vr(y + 2, 2), vTr, off + 4 * ys))]
    o += adv(vO, (t - G.ot) * 0x100000); G.ot = t
    if t < opt('fake', 0) and typ in OPT.get('ftyp', 'AB'):
        FA, FB = OT + 10, OT + 11
        o += [I('s_lshl_b32 s%d, s2, 15' % sT0), I('s_lshl_b32 s%d, s%d, 10' % (sT1, sW)), I('s_add_u32 s%d, s%d, s%d' % (sT0, sT0, sT1)),
              I('s_add_u32 s%d, s%d, %d' % (sT0, sT0, (t >> 1) * 8192)),
              I('v_lshl_add_u32 v%d, v%d, 4, s%d' % (FA, vLane, sT0)),
              I('global_store_dwordx4 v%d, %s, s[40:41] sc1' % (FA, vr(y, 4))),
              I('v_xor_b32 v%d, 0x8000000, v%d' % (FA, FA)),
              pf('global_load_dwordx4 %s, v%d, s[40:41] sc1' % (vr(acc(0) if typ == 'A' else 36, 4) if False else vr(68, 4), FA)),
              I('s_lshl_b32 s%d, s%d, 2' % (sT0, sSub)), I('s_and_b32 s%d, s%d, 3' % (sT1, sW)), I('s_add_u32 s%d, s%d, s%d' % (sT0, sT0, sT1)),
              I('s_lshl_b32 s%d, s%d, 15' % (sT0, sT0)), I('s_and_b32 s%d, s%d, 0x3c0' % (sT1, sCh0)), I('s_lshl_b32 s%d, s%d, 1' % (sT1, sT1)),
              I('s_add_u32 s%d, s%d, s%d' % (sT0, sT0, sT1)), I('s_add_u32 s%d, s%d, %d' % (sT0, sT0, t * 0x100000 + (2048 if typ == 'B' else 0))),
              I('v_lshrrev_b32 v%d, 3, v%d' % (FB, vLane)), I('v_lshl_add_u32 v%d, v%d, 12, s%d' % (FB, FB, sT0)),
              I('v_and_b32 v%d, 7, v%d' % (FA, vLane)), I('v_lshl_add_u32 v%d, v%d, 4, v%d' % (FB, FA, FB))]
        if typ == 'B':
            for i in range(4):
                o += [I('v_lshlrev_b32 v%d, 16, v%d' % (t0 + 1, qreg + i)), I('v_and_b32 v%d, 0xffff0000, v%d' % (qreg + i, qreg + i)),
                      I('v_lshlrev_b32 v%d, 16, v%d' % (t0, y + i)), I('v_and_b32 v%d, 0xffff0000, v%d' % (res + i, y + i)),
                      I('v_mul_f32 v%d, v%d, v%d' % (t0, t0, t0 + 1)), I('v_mul_f32 v%d, v%d, v%d' % (res + i, res + i, qreg + i)),
                      I('v_cvt_pk_bf16_f32 v%d, v%d, v%d' % (res + i, t0, res + i))]
        o.append(I('global_store_dwordx4 v%d, %s, %s %s' % (FB, vr(res if typ == 'B' else y, 4), ptr(P_OUT), OPT.get('fpol', 'sc1'))))
        return o
    if typ == 'B':
        for i in range(4):
            o += [I('v_lshlrev_b32 v%d, 16, v%d' % (t0 + 1, qreg + i)),
                  I('v_and_b32 v%d, 0xffff0000, v%d' % (qreg + i, qreg + i)),
                  I('v_lshlrev_b32 v%d, 16, v%d' % (t0, y + i)),
                  I('v_and_b32 v%d, 0xffff0000, v%d' % (y + i, y + i)),
                  I('v_mul_f32 v%d, v%d, v%d' % (t0, t0, t0 + 1)),
                  I('v_mul_f32 v%d, v%d, v%d' % (y + i, y + i, qreg + i)),
                  I('v_cvt_pk_bf16_f32 v%d, v%d, v%d' % (res + i, t0, y + i))]
        o.append(I('global_store_dwordx4 v%d, %s, %s %s' % (vO, vr(res, 4), ptr(P_OUT), OPT.get('st', '') if t < opt('stn', 8) else '')))
    else:
        o.append(I('global_store_dwordx4 v%d, %s, %s %s' % (vO, vr(y, 4), ptr(P_OUT), OPT.get('st', '') if t < opt('stn', 8) else '')))
    return nt_split(o) if t < opt('nt1', 0) else o

_ntl = [0]
def nt_split(o):
    if not opt('nt1', 0): return o
    st = o[-1]; _ntl[0] += 1; k = _ntl[0]
    def raw(a): a.out.append('    ' + st.text + ' ' + OPT.get('ntp', 'nt')); a.out.append('    s_branch L_ntj%d' % k)
    def pre(a):
        r_ = sorted(r for kk, r in st.rd if kk == 'v')[-1]; a.add(I('v_mov_b32 v%d, v%d' % (r_, r_)))
    return o[:-1] + [pre, I('s_cmp_lg_u32 s%d, 7' % sSub), I('s_cbranch_scc1 L_nt%d' % k), raw, 'L_nt%d:' % k, st, 'L_ntj%d:' % k]

def lane_consts(typ, t0=TMP):
    ys = B_YS if typ == 'B' else A_SS
    yb = B_Y if typ == 'B' else A_S0 + A_Y
    t1 = t0 + 1
    o = [I('s_mul_i32 s%d, s%d, %d' % (sT0, sW, ys)), I('s_add_u32 s%d, s%d, %d' % (sT0, sT0, yb)),
         I('v_lshl_add_u32 v%d, v%d, 3, s%d' % (vYw, vLane, sT0)),
         I('s_lshl_b32 s%d, s%d, 7' % (sT0, sW)), I('s_add_u32 s%d, s%d, %d' % (sT0, sT0, yb - 512)),
         I('v_bfe_u32 v%d, v%d, 2, 2' % (t0, vLane)),
         I('v_mul_u32_u24 v%d, %d, v%d' % (t0, ys, t0)),
         I('v_lshrrev_b32 v%d, 4, v%d' % (t1, vLane)),
         I('v_lshl_add_u32 v%d, v%d, 5, v%d' % (t0, t1, t0)),
         I('v_and_b32 v%d, 3, v%d' % (t1, vLane)),
         I('v_lshl_add_u32 v%d, v%d, 3, v%d' % (t0, t1, t0)),
         I('v_add_u32 v%d, s%d, v%d' % (vTr, sT0, t0)),
         I('s_lshl_b32 s%d, s%d, 6' % (sT0, sW)), I('s_and_b32 s%d, s%d, 0x100' % (sT0, sT0)), I('s_and_b32 s%d, s%d, 3' % (sT1, sW))]
    if typ == 'B':
        o += [I('s_lshl_b32 s%d, s%d, 3' % (sT1, sT1)), I('s_add_u32 s%d, s%d, s%d' % (sT0, sT0, sT1)),
              I('v_lshrrev_b32 v%d, 3, v%d' % (t0, vLane)),
              I('v_lshlrev_b32 v%d, 5, v%d' % (t0, t0)),
              I('v_lshl_add_u32 v%d, v%d, 1, v%d' % (t0, t1, t0)),
              I('v_bfe_u32 v%d, v%d, 2, 1' % (t1, vLane)),
              I('v_add3_u32 v%d, v%d, v%d, s%d' % (t0, t0, t1, sT0)),
              I('s_lshl_b32 s%d, s%d, 1' % (sT1, sCh0)),
              I('v_lshl_add_u32 v%d, v%d, 11, s%d' % (vQ, t0, sT1)),
              I('s_add_u32 s%d, s%d, 2048' % (sT1, sT1)),
              I('v_lshl_add_u32 v%d, v%d, 12, s%d' % (vO, t0, sT1))]
    else:
        o += [I('s_lshl_b32 s%d, s%d, 2' % (sT1, sT1)), I('s_add_u32 s%d, s%d, s%d' % (sT0, sT0, sT1)),
              I('v_lshrrev_b32 v%d, 2, v%d' % (t0, vLane)),
              I('v_lshl_add_u32 v%d, v%d, 4, v%d' % (t0, t0, t1)),
              I('v_add_u32 v%d, s%d, v%d' % (t0, sT0, t0)),
              I('s_lshl_b32 s%d, s%d, 1' % (sT1, sCh0)),
              I('v_lshl_add_u32 v%d, v%d, 12, s%d' % (vO, t0, sT1))]
    return o

def gather_addr(ta, tc, tt):
    return [I('s_lshl_b32 s%d, s%d, 17' % (sT0, sWr)), I('s_lshl_b32 s%d, s%d, 1' % (sT1, sCh0)), I('s_add_u32 s%d, s%d, s%d' % (sT0, sT0, sT1)),
            I('s_add_u32 s%d, s%d, 4096' % (sT0, sT0)),
            I('v_lshrrev_b32 v%d, 2, v%d' % (ta, vLane)), I('v_and_b32 v%d, 3, v%d' % (tc, vLane)),
            I('v_lshlrev_b32 v%d, 13, v%d' % (tt, ta)), I('v_lshl_add_u32 v%d, v%d, 2, v%d' % (tt, tc, tt)),
            I('v_add_u32 v%d, s%d, v%d' % (vG, sT0, tt))]

def pingpong(a, typ, Go, Gy, sblocks, final, groups):
    ac = Acc()
    if OPT.get('thr', ''):
        a.run([I('s_bfe_u32 s43, s%d, 0x30006' % sCh0), I('s_cmp_eq_u32 s43, 2') if not opt('thrall', 0) else I('s_cmp_lg_u32 s43, 3'), I('s_cselect_b32 s43, 1, 0')])
    if opt('fake', 0): a.run([I('s_load_dwordx2 s[40:41], s[0:1], 136'), WAIT(lg=0), I('s_add_u32 s40, s40, 0x1000000'), I('s_addc_u32 s41, s41, 0')])
    L = lambda s: 'L_%s_%s' % (typ, s)
    n = len(groups)
    def sblk(G, h):
        a.vm = G.vm; a.hist = []
        if not (opt('dbg', 0) == 1 and h == 7): a.run(stamp(5 + h))
        if h == 0 and opt('sprio', 0): a.add('s_setprio %d' % opt('sprio', 0))
        sw = nogap(sblocks[h](G))
        if opt('noside', 0): sw = [z for z in sw if not isinstance(z, Ins)]
        if opt('novm', 0): sw = [z for z in sw if not (isinstance(z, Ins) and z.kind in ('vld', 'vst'))]
        if opt('nodsw', 0): sw = [z for z in sw if not (isinstance(z, Ins) and z.kind in ('dsw',))]
        if opt('nomf', 0): sw = [z for z in sw if not (isinstance(z, Ins) and z.kind in ('mfma',))]
        if typ in OPT.get('thr', ''):
            s2 = []
            for z in sw:
                if isinstance(z, Ins) and z.kind in ('vld', 'vst') and z.mn.startswith('global') and ('x4' in z.mn or 'offset:-4096' in z.text) and h >= opt('thr0', 0):
                    _ntl[0] += 1
                    s2 += [I('s_cmp_eq_u32 s43, 0'), I('s_cbranch_scc1 L_th%d' % _ntl[0]), I('s_waitcnt vmcnt(%d)' % opt('thrn', 0)), 'L_th%d:' % _ntl[0]]
                s2.append(z)
            sw = s2
        a.run(sw)
        a.run([WAIT(lg=0)])
        if opt('sprio', 0): a.add('s_setprio 0')
        if h == 2 * n - 1: a.add('s_barrier')
        if opt('send', 0): a.run(stamp(5 + h))
        G.vm = a.vm
    a.run([I('s_cmp_eq_u32 s%d, 0' % sGrp), I('s_cbranch_scc1 %s' % L('M0'))])
    sblk(Gy, 0)
    for j, phs in enumerate(groups):
        a.run([L('M%d' % j) + ':'])
        a.vm = []; a.hist = []
        for i, ph in enumerate(phs):
            m_block(a, typ, ph, ac, do_early=(i == 0), do_late=(i == len(phs) - 1), first=(j == 0))
        assert not a.vm
        if j < n - 1:
            a.run([I('s_cmp_eq_u32 s%d, 0' % sGrp), I('s_cbranch_scc1 %s' % L('S%d' % (2 * j + 1)))])
            sblk(Gy, 2 * j + 2)
            if j == n - 2:
                a.run(adv(vO, (6 + Gy.g - Gy.ot) * 0x100000)); Gy.ot = 6 + Gy.g
            a.run([I('s_branch %s' % L('M%d' % (j + 1))), L('S%d' % (2 * j + 1)) + ':'])
            sblk(Go, 2 * j + 1)
        else:
            a.run([I('s_cmp_lg_u32 s%d, 0' % sGrp), I('s_cbranch_scc1 %s' % L('F'))])
            sblk(Go, 2 * n - 1)
            a.run(adv(vO, (6 + Go.g - Go.ot) * 0x100000)); Go.ot = 6 + Go.g
            a.run([L('F') + ':'])
    final(Go, Gy)

AM, STG, QB = 12, [36, 48], 60

def B_gather(G, c, st):
    s = STG[st]
    o = adv(vG, (c - G.gc) * 0x80000) + adv(vH, (c - G.gc) * 0x80000); G.gc = c
    o.append(I('global_load_dwordx4 %s, v%d, %s' % (vr(s, 4), vG, ptr(P_K))))
    o.append(I('buffer_load_dwordx4 %s, v%d, s[48:51], 0 offen' % (vr(s + 8, 4), vH)))
    o.append(I('global_load_dwordx4 %s, v%d, %s' % (vr(s + 4, 4), vG, ptr(P_V))))
    return o

def B_kv(G, c, st, prio=True):
    s = STG[st]
    K, V, H = s, s + 4, s + 8
    D, DV, cv = TS, TS + 8, UB
    o = [I('v_mov_b32_dpp v%d, v%d row_shr:1 row_mask:0xf bank_mask:0xf' % (H + i, K + i)) for i in range(4)]
    o.append(I('v_mov_b32 v%d, v%d' % (cv, V)))
    if prio: o.append(I('s_setprio 3'))
    o += [MF(D, AM, K), MF(D + 4, AM + 4, K), MF(DV, AM + 16, V), MF(D, AM + 8, H, D), MF(D + 4, AM + 12, H, D + 4), MF(DV + 4, AM + 20, V)]
    if prio: o.append(I('s_setprio %d' % opt('sprio', 0)))
    w = []
    for e in range(2):
        ou = D + 4 * e; t = cv + 4 * e
        v = [I('v_mul_f32 v%d, v%d, v%d' % (ou + i, ou + i, DV + 4 * e + i)) for i in range(4)]
        v += [I('v_cvt_pk_bf16_f32 v%d, v%d, v%d' % (t, ou + 3, ou + 2)),
              I('v_cvt_pk_bf16_f32 v%d, v%d, v%d' % (t + 1, ou + 1, ou)),
              I('v_cvt_pk_bf16_f32 v%d, v%d, v%d' % (t + 2, ou + 2, ou + 1))]
        o += zipper(v, w) if w else v
        off = e * B_BLK + 512 * (7 - c + G.g)
        w = [I('ds_write_b64 v%d, %s offset:%d' % (vRw, vr(t, 2), off + 2 + B_RS)),
             I('ds_write_b16 v%d, v%d offset:%d' % (vRw, t, off)),
             I('ds_write_b32 v%d, v%d offset:%d' % (vRw, t + 2, off + 2)),
             I('ds_write_b16_d16_hi v%d, v%d offset:%d' % (vRw, t + 1, off + 6))]
    return o + w

def B_q(G, t, reg):
    o = adv(vQ, (t - G.qt) * 0x80000); G.qt = t
    if t < opt('fake', 0) and 'B' in OPT.get('ftyp', 'AB'):
        return o + [I('v_lshlrev_b32 v%d, 4, v%d' % (reg, vLane)), I('v_and_b32 v%d, 0x3ff800, v%d' % (reg + 1, vQ)), I('v_readfirstlane_b32 s%d, v%d' % (sT0, reg + 1)),
                    I('v_add_u32 v%d, s%d, v%d' % (reg, sT0, reg)), I('global_load_dwordx4 %s, v%d, %s' % (vr(reg, 4), reg, ptr(P_Q)))]
    return o + [I('global_load_dwordx4 %s, v%d, %s' % (vr(reg, 4), vQ, ptr(P_Q)))]

def wb1(typ, h):
    L = 'L_wb%s%d' % (typ, h)
    def raw(a): a.out.append('    buffer_wbl2 sc1')
    return [I('s_and_b32 s%d, s%d, 3' % (sT0, sW)), I('s_and_b32 s%d, s%d, 0x78' % (sT1, sCh0)), I('s_or_b32 s%d, s%d, s%d' % (sT0, sT0, sT1)),
            I('s_cmp_lg_u32 s%d, 0' % sT0), I('s_cbranch_scc1 %s' % L), raw, L + ':']

def pf(text):
    x = I(text); x.wr = set(); return x

def fdma(cs, js):
    o = []
    for c in cs:
        o += [I('s_add_u32 m0, s%d, %d' % (sBlk, c * B_F1 + 64))]
        o += [I('buffer_load_dwordx4 v%d, s[52:55], %s offen offset:%d lds' % (vBp, '4' if c else '0', 1024 * j), tag='flt') for j in js]
    return o

def early_B(a):
    a.run([I('s_mul_i32 s%d, s%d, %d' % (sBlk, sW, B_BLK)), I('s_lshl_b32 s%d, s3, 12' % sT0),
           I('v_lshl_add_u32 v%d, v%d, 4, s%d' % (vBp, vLane, sT0)), I('v_mov_b32 v16, s%d' % sT0),
           I('s_mov_b32 s54, 0x400000'), I('s_mov_b32 s55, 0x20000'), WAIT(lg=0)])
    a.run(stamp(1))
    a.run([I('s_mov_b32 s52, s%d' % (8 + 2 * P_SK)), I('s_mov_b32 s53, s%d' % (9 + 2 * P_SK))])
    a.run(fdma([0], [0, 1]))
    a.run([I('global_load_dword v76, v16, %s' % ptr(P_SK)), I('global_load_ushort v77, v17, %s' % ptr(P_SD))])

def tlb_touch(a, typ, tmp):
    n = opt('tlb', 0)
    if not n: return
    lst = [P_K, P_V, P_Q, P_OUT] if typ == 'B' else [P_U, P_K, P_V, P_Q, P_OUT]
    L = 'L_tlb' + typ
    vm = list(a.vm)
    a.run([I('s_cmp_lg_u32 s%d, 7' % sW), I('s_cbranch_scc1 %s' % L),
           I('v_lshrrev_b32 v%d, %d, v%d' % (tmp, 6 - n, vLane)), I('v_lshlrev_b32 v%d, %d, v%d' % (tmp, 22 - n, tmp))])
    for t in lst[:-1]: a.run([pf('global_load_dword v62, v%d, %s' % (tmp, ptr(t)))])
    a.run([pf('global_load_dword v62, v%d, %s' % (tmp, ptr(P_OUT))), I('v_add_u32 v%d, 0x400000, v%d' % (tmp, tmp)), pf('global_load_dword v62, v%d, %s' % (tmp, ptr(P_OUT)))])
    a.run([L + ':'])
    a.vm = vm

def only_older(a, code, L):
    vm = list(a.vm)
    a.run([I('s_cmp_lg_u32 s%d, 0' % sGrp), I('s_cbranch_scc1 %s' % L)])
    a.run(code)
    a.run([L + ':'])
    a.vm = vm

def gen_B(a):
    X = 64
    n_, g_, t0, t1, t2 = X, X + 1, X + 2, X + 3, X + 4
    vS = X + 8
    lS, lK0, lD = X + 10, X + 12, X + 13
    a.run(['L_B:'])
    a.run([I('s_xor_b32 s%d, s%d, 1' % (sGrp, sGrp))])
    if opt('hilate', 0) == 0: only_older(a, fdma([0], [2, 3]), 'L_B_nf')
    tlb_touch(a, 'B', X + 9)
    a.run([I('v_and_b32 v%d, 15, v%d' % (n_, vLane)), I('v_lshrrev_b32 v%d, 4, v%d' % (g_, vLane)),
           I('v_sub_u32 v%d, v%d, v%d' % (t0, n_, g_)), I('v_and_b32 v%d, 3, v%d' % (t0, t0)),
           I('v_and_b32 v%d, 12, v%d' % (t1, n_)), I('v_lshlrev_b32 v%d, 2, v%d' % (t1, t1)),
           I('v_lshl_add_u32 v%d, v%d, 1, v%d' % (t0, t0, t1)),
           I('s_lshl_b32 s%d, s%d, 3' % (sT0, sCh0)), I('v_add_u32 v%d, s%d, v%d' % (vS, sT0, t0)),
           I('global_load_ushort v%d, v%d, %s' % (lS, vS, ptr(P_SH))),
           I('global_load_ushort v%d, v%d, %s offset:8' % (lS + 1, vS, ptr(P_SH))),
           I('s_mov_b32 s48, s%d' % (8 + 2 * P_K)), I('s_mov_b32 s49, s%d' % (9 + 2 * P_K)),
           I('s_mov_b32 s50, 0x400000'), I('s_mov_b32 s51, 0x20000'),
           I('v_lshl_add_u32 v%d, v%d, 2, v%d' % (t0, n_, g_)),
           I('s_lshl_b32 s%d, s%d, 17' % (sT0, sW)), I('s_lshl_b32 s%d, s%d, 1' % (sT1, sCh0)), I('s_add_u32 s%d, s%d, s%d' % (sT0, sT0, sT1)),
           I('v_lshl_add_u32 v%d, v%d, 11, s%d' % (vG, t0, sT0)),
           I('v_add_u32 v%d, -1, v%d' % (t0, t0)), I('v_add_u32 v%d, 0xffffe000, v%d' % (vH, vG)),
           I('v_cmp_gt_u32 vcc, 3, v%d' % t0), I('v_mov_b32 v%d, 0x80000000' % t1),
           I('v_cndmask_b32 v%d, v%d, v%d, vcc' % (vH, t1, vH))])
    G0 = Grp(0)
    a.run([I('v_mul_u32_u24 v%d, %d, v%d' % (t0, 2 * B_BLK, g_)),
           I('v_lshlrev_b32 v%d, 3, v%d' % (t1, n_)), I('v_sub_u32 v%d, v%d, v%d' % (t0, t0, t1)),
           I('s_lshl_b32 s%d, s%d, 7' % (sT0, sW)), I('s_sub_u32 s%d, %d, s%d' % (sT0, 504 + B_R0 - 2, sT0)),
           I('v_add_u32 v%d, s%d, v%d' % (vRw, sT0, t0)),
           I('v_add_u32 v%d, 1, v%d' % (t0, n_)),
           I('v_and_b32 v%d, 1, v%d' % (t1, t0)), I('v_and_b32 v%d, 30, v%d' % (t0, t0)),
           I('v_mul_u32_u24 v%d, %d, v%d' % (t1, B_F1, t1)),
           I('v_lshl_add_u32 v%d, v%d, 2, v%d' % (t0, t0, t1)),
           I('v_and_b32 v%d, 48, v%d' % (t2, vLane)),
           I('v_add3_u32 v%d, v%d, v%d, s%d' % (vT, t0, t2, sBlk)),
           I('v_add_u32 v%d, 2048, v%d' % (vT2, vT)),
           I('v_and_b32 v%d, 1, v%d' % (t0, vLane)), I('v_mul_u32_u24 v%d, %d, v%d' % (t0, B_RS, t0)),
           I('v_and_b32 v%d, 14, v%d' % (t1, vLane)), I('v_lshlrev_b32 v%d, 5, v%d' % (t1, t1)),
           I('v_sub_u32 v%d, v%d, v%d' % (t0, t0, t1)),
           I('s_add_u32 s%d, s%d, %d' % (sT0, sBlk, B_R0 + 448)),
           I('v_add3_u32 v%d, v%d, v%d, s%d' % (vU, t0, t2, sT0))])
    a.run(lane_consts('B', t0))
    if opt('fq', 0):
        a.run([I('v_readfirstlane_b32 s%d, v%d' % (sT0, vQ)), I('s_and_b32 s%d, s%d, 0xffffff80' % (sT0, sT0)),
               I('v_lshrrev_b32 v%d, 3, v%d' % (t0, vLane)), I('v_lshl_add_u32 v%d, v%d, 11, s%d' % (vQ, t0, sT0)),
               I('v_and_b32 v%d, 7, v%d' % (t0, vLane)), I('v_lshl_add_u32 v%d, v%d, 4, v%d' % (vQ, t0, vQ))])
    if opt('fo', 0):
        a.run([I('v_readfirstlane_b32 s%d, v%d' % (sT0, vO)), I('s_and_b32 s%d, s%d, 0xffffff80' % (sT0, sT0)),
               I('s_lshl_b32 s%d, s%d, 17' % (sT1, sSub)), I('s_add_u32 s%d, s%d, s%d' % (sT0, sT0, sT1)),
               I('v_lshrrev_b32 v%d, 3, v%d' % (t0, vLane)), I('v_lshl_add_u32 v%d, v%d, 12, s%d' % (vO, t0, sT0)),
               I('v_and_b32 v%d, 7, v%d' % (t0, vLane)), I('v_lshl_add_u32 v%d, v%d, 4, v%d' % (vO, t0, vO))])
    Z = X + 16
    a.run([I('v_mov_b32 v%d, 0' % (Z + i)) for i in range(4)])
    a.run([I('v_and_b32 v%d, 31, v%d' % (t0, vLane)), I('v_min_u32 v%d, 27, v%d' % (t0, t0)),
           I('v_lshrrev_b32 v%d, 5, v%d' % (t1, vLane)), I('v_mul_u32_u24 v%d, %d, v%d' % (t1, B_RS, t1)),
           I('v_lshl_add_u32 v%d, v%d, 4, v%d' % (t0, t0, t1)),
           I('v_add_u32 v%d, s%d, v%d' % (t0, sBlk, t0)), I('v_mov_b32 v%d, s%d' % (t1, sBlk)),
           I('ds_write_b128 v%d, %s offset:%d' % (t0, vr(Z, 4), B_R0 + 4096)),
           I('ds_write_b16 v%d, v%d offset:%d' % (t1, Z, B_R0 + 4094)),
           I('v_min_u32 v%d, 32, v%d' % (QB, vLane)),
           I('v_cmp_lt_u32 vcc, 16, v%d' % QB),
           I('v_mov_b32 v%d, %d' % (t1, B_F1 - 68)),
           I('s_mov_b32 s56, 0x00010000'), I('s_mov_b32 s57, -1'),
           I('v_cndmask_b32 v%d, 0, v%d, vcc' % (t1, t1)),
           I('v_lshl_add_u32 v%d, v%d, 2, v%d' % (t1, QB, t1)),
           I('v_add_u32 v%d, s%d, v%d' % (QB, sBlk, t1))])
    BM = [96, 98, 100, 58]
    for i in range(4):
        a.run([I('s_mov_b32 s%d, 0x%08x' % (BM[i], 0x000f000f << (4 * i))), I('s_mov_b32 s%d, 0x%08x' % (BM[i] + 1, 0x000f000f << (4 * i)))])
    a.run([I('s_mov_b32 s40, 0xeeeeffff'), I('s_mov_b32 s41, 0x8888cccc'),
           I('s_mov_b32 s42, 0x22221111'), I('s_mov_b32 s43, 0x88884444'),
           I('v_mov_b32 v%d, 0x3f80' % t0), I('v_mov_b32 v%d, 1.0' % t1),
           I('v_cndmask_b32 v%d, 0, v%d, s[42:43]' % (t0, t0)), I('v_cndmask_b32 v%d, 0, v%d, s[42:43]' % (t1, t1))])
    for e in range(2):
        a.run([I('v_cndmask_b32 v%d, 0, v%d, s[%d:%d]' % (AM + 16 + 4 * e + i, t0 + e, BM[i], BM[i] + 1)) for i in range(4)])
    if not opt('lcopy', 2):
        only_older(a, fdma([1], [2, 3]), 'L_B_nf3')
        a.run(fdma([1], [0, 1]))
    if opt('bbar', 1): a.add('s_barrier')
    if opt('hilate', 0) == 1: only_older(a, fdma([0], [2, 3]), 'L_B_nf')
    a.run(B_gather(G0, 0, 0))
    a.run([I('v_lshlrev_b32 v%d, 16, v%d' % (lS + 1, lS + 1)),
           I('v_cndmask_b32 v%d, 0, v%d, s[40:41]' % (t0, lS)), I('v_cndmask_b32 v%d, 0, v%d, s[40:41]' % (t1, lS + 1)),
           I('v_sub_u32 v%d, v%d, v%d' % (lS, lS, t0)), I('v_sub_u32 v%d, v%d, v%d' % (lS + 1, lS + 1, t1))])
    for e in range(2):
        a.run([I('v_cndmask_b32 v%d, 0, v%d, s[%d:%d]' % (AM + 4 * e + i, t0 + e, BM[i], BM[i] + 1)) for i in range(4)])
        a.run([I('v_cndmask_b32 v%d, 0, v%d, s[%d:%d]' % (AM + 8 + 4 * e + i, lS + e, BM[i], BM[i] + 1)) for i in range(4)])
    a.run([I('v_lshlrev_b32 v%d, 16, v%d' % (t0, lK0)), I('v_lshlrev_b32 v%d, 16, v%d' % (lD, lD)), I('v_and_b32 v%d, 0xffff0000, v%d' % (lK0, lK0)),
           I('v_add_f32 v%d, v%d, v%d' % (t0, t0, lD)), I('v_cvt_pk_bf16_f32 v%d, v%d, v%d' % (t0, t0, lK0)),
           I('v_cndmask_b32 v%d, 0, v%d, s[56:57]' % (QB + 1, t0))])
    a.run(stamp(2))
    def lcopy(js, tmp):
        o = [I('s_mov_b32 m0, s%d' % sBlk)]
        o += [I('ds_read_addtid_b32 v%d offset:%d' % (tmp + i, 64 + 256 * j)) for i, j in enumerate(js)]
        o += [I('ds_write_addtid_b32 v%d offset:%d' % (tmp + i, B_F1 + 60 + 256 * j)) for i, j in enumerate(js)]
        return o
    def tload(wait=True):
        o = ([WAITTAG('flt')] if wait else []) + (lcopy(range(8), ACC) if opt('lcopy', 2) else []) + [I('ds_write_b32 v%d, v%d' % (QB, QB + 1))]
        for r in RORD:
            for p in range(4): o += tB_load(p, r)
        return o
    Go, Gy = Grp(1), Grp(0)
    if opt('xkv', 0):
        a.run([WAITTAG('flt')])
        vm0 = list(a.vm); lg0 = list(a.lg); h0 = list(a.hist)
        a.run([I('s_cmp_eq_u32 s%d, 0' % sGrp), I('s_cbranch_scc1 L_B_pz')])
        if opt('xkv', 0) == 2: a.run(lcopy(range(8), ACC))
        a.run(B_kv(Gy, 0, 0, prio=False))
        a.run(stamp(3))
        a.run(B_gather(Gy, 2, 1))
        tl = tload(False)
        if opt('xkv', 0) == 2: tl = tl[17:]
        a.run(tl)
        Gy.vm = list(a.vm)
        a.run([WAIT(lg=0), I('s_branch L_B_pj'), 'L_B_pz:'])
        a.vm = vm0; a.lg = lg0; a.hist = h0
        a.run(tload(False)); a.run(lcopy(range(8, 16), ACC + 8))
        a.run(B_kv(Go, 1, 0, prio=False))
        a.run(stamp(3))
        Go.vm = []
        a.run([WAIT(lg=0), 'L_B_pj:'])
    else:
        if opt('dbg', 0) == 1: a.run([WAITTAG('flt')] + stamp(1))
        a.run(tload())
        if opt('dbg', 0) == 1: a.run(stamp(2))
        if opt('lcopy', 2):
            lg_ = list(a.lg)
            a.run([I('s_cmp_lg_u32 s%d, 0' % sGrp), I('s_cbranch_scc1 L_B_lc')])
            a.run(lcopy(range(8, 16), ACC + 8))
            a.run(['L_B_lc:'])
            a.lg = lg_ + [(set(), None)]
        a.run(B_kv(G0, 0, 0, prio=False))
        a.run(stamp(3))
        assert not a.vm
        Go.vm = []
        a.run([I('s_cmp_eq_u32 s%d, 0' % sGrp), I('s_cbranch_scc1 L_B_pj')])
        a.run(B_gather(Gy, 2, 1))
        Gy.vm = list(a.vm)
        a.run(['L_B_pj:'])
    a.run([WAIT(lg=0), I('s_barrier')])
    a.run(stamp(4))
    def wb(h): return wb1('B', h) if str(h) in OPT.get('wbB', '') else []
    fo, fy = 6 + Go.g, 6 + Gy.g
    if opt('bs', 0) == 0:
      OPT.setdefault('mid', '0,0,0,0')
      S = {
        0: lambda G: fdma([0], [2, 3]) + B_gather(G, 3, 0) + ([] if opt('lcopy', 2) > 1 else fdma([1], [2, 3])) + B_kv(G, 2, 1) + B_gather(G, 4, 1) + B_kv(G, 3, 0) + B_q(G, 0, QB) + [WAITTAG('flt')] + (lcopy(range(8, 16), ACC) if opt('lcopy', 2) > 1 else []),
        1: lambda G: B_gather(G, 5, 0) + B_gather(G, 7, 1) + B_q(G, 1, QB) + B_kv(G, 5, 0),
        2: lambda G: B_gather(G, 6, 0) + B_kv(G, 4, 1) + out_unit('B', G, 0, QB) + B_q(G, 2, acc(0)) + B_q(G, 4, QB),
        3: lambda G: B_q(G, 3, acc(2)) + out_unit('B', G, 1, QB) + B_q(G, 5, acc(3)) + B_kv(G, 7, 1) + B_q(G, fo, acc(1)),
        4: lambda G: B_q(G, fy, acc(1)) + B_kv(G, 6, 0) + out_unit('B', G, 2, acc(0)),
        5: lambda G: out_unit('B', G, 3, acc(2)),
        6: lambda G: out_unit('B', G, 4, QB),
        7: lambda G: out_unit('B', G, 5, acc(3)),
      }
    else:
      OPT.setdefault('mid', '0,0,0,0')
      def hook(a_):
          vm = a_.vm; a_.vm = Go.vm
          a_.run([I('s_cmp_lg_u32 s%d, 0' % sGrp), I('s_cbranch_scc1 L_B_hk')])
          a_.run(B_gather(Go, 4, 1))
          a_.run(['L_B_hk:'])
          Go.vm = a_.vm; a_.vm = vm
      if opt('hk', 90): MHOOK[('B', 0, opt('hk', 90))] = hook
      S = {
        0: lambda G: fdma([0], [2, 3]) + B_gather(G, 3, 0) + fdma([1], [2, 3]) + B_kv(G, 2, 1) + B_q(G, 0, QB) + B_kv(G, 3, 0) + [WAITTAG('flt')] + (B_gather(G, 6, 1) if opt('g6', 0) else []),
        1: lambda G: ([] if opt('hk', 90) else B_gather(G, 4, 1)) + B_gather(G, 5, 0) + B_kv(G, 4, 1) + B_gather(G, 7, 1) + B_q(G, 1, QB) + B_kv(G, 5, 0),
        2: lambda G: ([] if opt('g6', 0) else B_gather(G, 6, 1)) + out_unit('B', G, 0, QB) + B_q(G, 2, acc(0)) + B_q(G, 4, QB) + B_kv(G, 6, 1),
        3: lambda G: B_q(G, 3, acc(2)) + out_unit('B', G, 1, QB) + B_q(G, 5, acc(3)) + B_kv(G, 7, 1) + B_q(G, fo, acc(1)),
        4: lambda G: out_unit('B', G, 2, acc(0)) + B_q(G, fy, acc(1)),
        5: lambda G: out_unit('B', G, 3, acc(2)),
        6: lambda G: out_unit('B', G, 4, QB),
        7: lambda G: out_unit('B', G, 5, acc(3)),
      }
    def final(Go, Gy):
        def need(G):
            n = None
            for i, (r, t) in enumerate(G.vm):
                if ('v', acc(1)) in r: n = len(G.vm) - 1 - i
            return n
        ns = [n for n in (need(Go), need(Gy)) if n is not None]
        a.vm = []; a.hist = []
        if ns: a.add('s_waitcnt vmcnt(%d)' % min(ns))
        a.run(out_unit('B', Go, 6 + Go.g, acc(1), OT=64))
    pingpong(a, 'B', Go, Gy, S, final, [[0], [1], [2], [3]])
    a.run(stamp_out()); a.run(probe_end('B'))
    a.add('s_endpgm')

def A_gather(G, c, st=None):
    if st is None: st = c & 3
    o = adv(vG, (c - G.gc) * 0x80000); G.gc = c
    for j in range(4):
        o.append(I('global_load_dword v%d, v%d, %s offset:%d' % (A_STG + 4 * st + j, vG, ptr(P_U), (j - 2) * 2048)))
    return o

def A_sig(G, c, st=None):
    if st is None: st = c & 3
    s = A_STG + 4 * st; t = SIGT
    o = []
    assert c <= G.wc
    for e in range(2):
        sel = 's48' if e == 0 else 's49'
        o += [I('v_perm_b32 v%d, v%d, v%d, %s' % (t + 2 * e, s + 2, s + 3, sel)),
              I('v_perm_b32 v%d, v%d, v%d, %s' % (t + 2 * e + 1, s, s + 1, sel)),
              I('ds_write_b64 v%d, %s offset:%d' % (vRw, vr(t + 2 * e, 2), e * A_RS + 512 * (G.wc - c)))]
    return o
def A_wset(G, c):
    o = adv(vRw, -512 * (c - G.wc)); G.wc = c
    return o

class Ring:
    def __init__(self, l): self.l = list(l); self.i = 0
    def pop(self):
        x = self.l[self.i % len(self.l)]; self.i += 1; return x

def pcmul(d, x, y, conj=False):
    D, X, Y = vr(d, 2), vr(x, 2), vr(y, 2)
    if conj:
        return [I('v_pk_mul_f32 %s, %s, %s op_sel_hi:[0,1] neg_hi:[0,1]' % (D, X, Y)),
                I('v_pk_fma_f32 %s, %s, %s, %s op_sel:[1,1,0] op_sel_hi:[1,0,1]' % (D, X, Y, D))]
    return [I('v_pk_mul_f32 %s, %s, %s op_sel_hi:[0,1]' % (D, X, Y)),
            I('v_pk_fma_f32 %s, %s, %s, %s op_sel:[1,1,0] op_sel_hi:[1,0,1] neg_lo:[1,0,0]' % (D, X, Y, D))]

def zipper(*lists):
    out = []
    n = max(len(l) for l in lists)
    idx = [0] * len(lists)
    for i in range(n):
        for k, l in enumerate(lists):
            want = (len(l) * (i + 1) + n - 1) // n
            while idx[k] < want:
                out.append(l[idx[k]]); idx[k] += 1
    return out

def gen_A(a):
    RAW = 112
    AM_ = OPT.get('amap', '')
    vPU = 122 if AM_ else vP
    a.run(([
           I('s_mov_b32 s43, s%d' % sCh0),
           I('s_lshl_b32 s%d, s2, 2' % sT0), I('s_lshr_b32 s%d, 0x%s, s%d' % (sT0, AM_, sT0)), I('s_and_b32 s%d, s%d, 7' % (sT0, sT0)),
           I('s_lshl_b32 s%d, s%d, 6' % (sT0, sT0)), I('s_and_b32 s%d, s43, 64' % sT1), I('s_lshl_b32 s%d, s%d, 3' % (sT1, sT1)),
           I('s_add_u32 s%d, s%d, s%d' % (sT0, sT0, sT1)), I('s_and_b32 s%d, s43, 56' % sT1), I('s_add_u32 s%d, s%d, s%d' % (sCh0, sT0, sT1)),
           I('s_add_u32 s3, s%d, s%d' % (sCh0, sW)), I('s_lshl_b32 s%d, s3, 1' % sT1), I('v_mov_b32 v17, s%d' % sT1),
           ] if AM_ else [I('s_mov_b32 s43, s%d' % sCh0)]) + [
           I('s_lshl_b32 s%d, s3, 8' % sT0), I('v_lshl_add_u32 v16, v%d, 2, s%d' % (vLane, sT0)),
           ] + ([
           I('s_bfe_u32 s%d, s2, 0x1000%d' % (sT0, 13 - opt('tbit', 6))), I('s_lshl_b32 s%d, s%d, 3' % (sT0, sT0)), I('s_add_u32 s%d, s%d, s%d' % (sT0, sT0, sSub)),
           I('s_lshl_b32 s%d, s%d, 16' % (sT0, sT0)),
           I('s_and_b32 s%d, s43, 0x%x' % (sT1, 0x1c0 if opt('cmap', 0) else 0x380)), I('s_lshl_b32 s%d, s%d, 1' % (sT1, sT1)), I('s_add_u32 s%d, s%d, s%d' % (sT0, sT0, sT1)),
           I('v_lshrrev_b32 v%d, 4, v0' % vP), I('v_lshl_add_u32 v%d, v%d, 11, s%d' % (vP, vP, sT0)),
           I('v_and_b32 v13, 8, v0'), I('v_lshl_add_u32 v%d, v13, %d, v%d' % (vP, 7 if opt('cmap', 0) else 4, vP)),
           ] if not opt('pfx', 0) else [
           I('s_lshl_b32 s%d, s%d, 17' % (sT0, sSub)), I('s_xor_b32 s%d, s%d, 64' % (sT1, sCh0)), I('s_lshl_b32 s%d, s%d, 1' % (sT1, sT1)), I('s_add_u32 s%d, s%d, s%d' % (sT0, sT0, sT1)),
           I('v_lshrrev_b32 v%d, 3, v0' % vP), I('v_lshl_add_u32 v%d, v%d, 11, s%d' % (vP, vP, sT0)),
           ]) + [
           WAIT(lg=0)])
    a.run(stamp(1))
    if opt('pf0late', 0) == -1:
        a.run([pf('global_load_dword v%d, v%d, %s' % (DUMMY, vP, ptr(P_K))), pf('global_load_dword v%d, v%d, %s' % (DUMMY, vP, ptr(P_V)))])
    a.run([I('global_load_ushort v%d, v17, %s' % (RAW + 6, ptr(P_LDT)))])
    for j in range(6):
        a.add(I('global_load_dword v%d, v16, %s' % (RAW + j, ptr(1 + j))))
    a.run([I('global_load_ushort v%d, v17, %s' % (RAW + 7, ptr(P_DSK)))])
    PMAP = {'u': P_U, 'k': P_K, 'v': P_V, 'q': P_Q}
    PL = lambda z: [(PMAP[z[i]], int(z[i + 1])) for i in range(0, len(z), 2)]
    PF = lambda z: [pf('global_load_dword v%d, v%d, %s' % (DUMMY, (vPU if t == P_U else vP) + Q, ptr(t))) for t, Q in PL(z)]
    if opt('pf0late', 0) == 0: a.run(PF(OPT.get('pf0', 'k0v0')))
    a.run([I('v_add_u32 v%d, 0x100000, v%d' % (vP + 1, vP)), I('v_add_u32 v%d, 0x200000, v%d' % (vP + 2, vP)), I('v_add_u32 v%d, 0x300000, v%d' % (vP + 3, vP))])
    if AM_:
        a.run([I('v_and_b32 v%d, 0xfffff800, v%d' % (vPU, vP)), I('v_lshl_add_u32 v%d, v13, 7, v%d' % (vPU, vPU)),
               I('s_and_b32 s%d, s%d, 0x1c0' % (sT1, sCh0)), I('s_lshl_b32 s%d, s%d, 1' % (sT1, sT1)), I('v_add_u32 v%d, s%d, v%d' % (vPU, sT1, vPU))]
              + [I('v_add_u32 v%d, 0x%x, v%d' % (vPU + i, 0x100000 * i, vPU)) for i in range(1, 4)])
    tlb_touch(a, 'A', 18)
    a.run(gather_addr(12, 13, 14))
    a.run([I('s_mul_i32 s%d, s%d, %d' % (sBlk, sW, A_SS)), I('s_add_u32 s%d, s%d, %d' % (sBlk, sBlk, A_S0)),
           I('v_mul_u32_u24 v14, %d, v13' % (2 * A_RS)),
           I('v_lshlrev_b32 v12, 3, v12'), I('v_sub_u32 v14, v14, v12'),
           I('s_lshl_b32 s%d, s%d, 7' % (sT0, sWr)), I('s_sub_u32 s%d, %d, s%d' % (sT0, 504 + 7 * 512, sT0)),
           I('v_add_u32 v%d, s%d, v14' % (vRw, sT0))])
    if opt('pf0late', 0) == 1: a.run(PF(OPT.get('pf0', 'k0v0')))
    m, g16, t0, t1, t2 = 76, 77, 78, 79, 75
    vK, vK1, vGa, vGe, vSw = 80, 81, 82, 83, 84
    a.run(lane_consts('A', t0))
    a.run([I('s_mov_b32 s48, 0x05040100'), I('s_mov_b32 s49, 0x07060302'), I('s_mov_b32 m0, s%d' % sBlk),
           I('v_and_b32 v%d, 15, v%d' % (m, vLane)),
           I('v_and_b32 v%d, 48, v%d' % (g16, vLane)),
           I('v_lshl_add_u32 v%d, v%d, 1, v%d' % (t0, m, g16)), I('v_add_u32 v%d, 2, v%d' % (t0, t0)),
           I('v_and_b32 v%d, 2, v%d' % (t1, t0)), I('v_mul_u32_u24 v%d, %d, v%d' % (t1, (A_KE1 - 2) // 2, t1)),
           I('v_add3_u32 v%d, v%d, v%d, s%d' % (vA1, t0, t1, sBlk)), I('v_add_u32 v%d, 1024, v%d' % (vA1b, vA1)),
           I('v_lshl_add_u32 v%d, v%d, 1, s%d' % (vSw, vLane, sBlk)),
           I('v_mov_b32 v%d, 0x3f80' % t0), I('s_mov_b32 vcc_hi, 0')])
    tabs = [(BD9, 20, 28), (BD7, 21, 27), (BD5, 22, 26), (BD3, 19, 21), (T32, 19, 20), (M16, 16, 18)]
    for k, (reg, lo, hi) in enumerate(tabs):
        a.run([I('s_mov_b32 vcc_lo, 0x%x' % (((1 << (hi + 1)) - 1) ^ ((1 << lo) - 1))),
               I('v_cndmask_b32 v%d, 0, v%d, vcc' % (88 + k, t0)) if k < 4 else I('v_cndmask_b32_e64 v%d, 0, -1, vcc' % (88 + k))])
    for k in range(6):
        a.run([I('ds_write_b16 v%d, v%d offset:%d' % (vSw, 88 + k, 128 * k)), I('ds_write_b16 v%d, v%d offset:%d' % (vSw, 88 + k, A_KE1 - 2 + 128 * k))])
    for k, (reg, lo, hi) in enumerate(tabs): a.run(rd2(reg, vA1, 32 * k))
    RS = 288
    R2, R1, C1 = 0, 8, 21
    a.run([I('ds_write_addtid_b32 v%d offset:%d' % (t0, R1 * RS)),
           I('s_mul_i32 s%d, s%d, %d' % (sT0, sW, A_RS)), I('s_add_u32 s%d, s%d, 480' % (sT1, sT0)),
           I('v_lshlrev_b32 v%d, 5, v%d' % (t1, m)), I('v_sub_u32 v%d, v%d, v%d' % (t1, g16, t1)),
           I('v_add_u32 v%d, s%d, v%d' % (vU, sT1, t1)),
           I('v_mov_b32 v92, 0'), I('v_mov_b32 v93, 0'), I('v_mov_b32 v94, 0'), I('v_mov_b32 v95, 0'),
           I('v_min_u32 v%d, 29, v%d' % (t1, vLane)), I('v_lshl_add_u32 v%d, v%d, 4, s%d' % (t1, t1, sT0)),
           I('ds_write_b128 v%d, v[92:95] offset:4096' % t1),
           I('v_lshlrev_b32 v%d, 2, v%d' % (t2, m)), I('v_sub_u32 v%d, v%d, v%d' % (t1, t2, g16)),
           I('s_add_u32 s%d, s%d, %d' % (sT0, sBlk, A_HA + 52)), I('v_add_u32 v%d, s%d, v%d' % (vHa, sT0, t1)),
           I('v_mul_u32_u24 v%d, %d, v%d' % (t1, RS, m)), I('v_add3_u32 v%d, v%d, v%d, s%d' % (vK, t1, g16, sBlk)),
           I('s_mov_b32 s%d, 0xcbaaa988' % sT0), I('s_mov_b32 s%d, 0xa9875421' % sT1),
           I('v_bfe_u32 v%d, s%d, v%d, 4' % (t1, sT0, t2)), I('v_min_u32 v%d, v%d, v%d' % (t1, t1, m)),
           I('v_mul_u32_u24 v%d, %d, v%d' % (t1, RS, t1)), I('v_add3_u32 v%d, v%d, v%d, s%d' % (vK1, t1, g16, sBlk)),
           I('v_bfe_u32 v%d, s%d, v%d, 4' % (t1, sT1, t2)), I('v_and_b32 v%d, 8, v%d' % (t0, m)),
           I('v_lshl_add_u32 v%d, v%d, 1, v%d' % (t1, t0, t1)), I('v_lshrrev_b32 v%d, 1, v%d' % (t0, g16)),
           I('v_lshl_add_u32 v%d, v%d, 6, v%d' % (t1, t1, t0)), I('v_add_u32 v%d, s%d, v%d' % (vGe, sBlk, t1)),
           I('v_and_b32 v%d, 8, v%d' % (t0, t0)), I('v_lshl_add_u32 v%d, v%d, 4, v%d' % (t0, m, t0)),
           I('v_and_b32 v%d, 32, v%d' % (t1, vLane)), I('v_lshl_add_u32 v%d, v%d, 4, v%d' % (t0, t1, t0)),
           I('v_add_u32 v%d, s%d, v%d' % (vGa, sBlk, t0))])
    GA = ACC
    if opt('ffpf', 0):
        a.run([I('s_lshr_b32 s%d, s%d, 1' % (sT0, sW)), I('s_add_u32 s%d, s%d, s%d' % (sT0, sT0, sCh0)), I('s_lshl_b32 s%d, s%d, 2' % (sT0, sT0)),
               I('s_and_b32 s%d, s%d, 1' % (sT1, sW)), I('s_add_u32 s%d, s%d, s%d' % (sT0, sT0, sT1)), I('s_add_u32 s%d, s%d, 2' % (sT0, sT0)),
               I('s_lshl_b32 s%d, s%d, 10' % (sT0, sT0)), I('v_lshl_add_u32 v%d, v%d, 4, s%d' % (t0, vLane, sT0)),
               pf('global_load_dword v%d, v%d, %s' % (DUMMY, t0, ptr(P_SK)))])
    a.run(PF(OPT.get('pf1', 'k1v1')))
    a.run(stamp(2))
    c12, dt = 72, 74
    P, E, PW, X, Y, CV, FR = 128, 136, 154, 160, 184, 64, 192
    za, bb, cc = P, P + 2, P + 4
    e = lambda k: E + 2 * k
    pw = lambda k: PW + 2 * k
    x = lambda k: X + 2 * k
    y = lambda b: Y + 2 * (b & 3)
    def setup(hi):
        o = []
        for j in range(6):
            o.append(I('v_and_b32 v%d, 0xffff0000, v%d' % (P + j, RAW + j)) if hi else I('v_lshlrev_b32 v%d, 16, v%d' % (P + j, RAW + j)))
        o += [I('v_mul_f32 v%d, v%d, v%d' % (za, za, c12)), I('v_mul_f32 v%d, v%d, v%d' % (za + 1, za + 1, c12 + 1)),
              I('v_mul_f32 v134, 0x43800000, v%d' % za), I('v_mul_f32 v135, 0x43800000, v%d' % (za + 1)),
              I('v_fract_f32 v%d, v%d' % (za + 1, za + 1)), I('v_exp_f32 v%d, v%d' % (za, za)), I('v_fract_f32 v135, v135'),
              I('v_cos_f32 v%d, v%d' % (e(1), za + 1)), I('v_sin_f32 v%d, v%d' % (e(1) + 1, za + 1)),
              I('v_exp_f32 v134, v134'),
              I('v_mul_f32 v%d, v%d, v%d' % (bb, bb, dt)), I('v_mul_f32 v%d, v%d, v%d' % (bb + 1, bb + 1, dt)),
              I('v_cos_f32 v%d, v135' % pw(1)), I('v_sin_f32 v%d, v135' % (pw(1) + 1)),
              I('v_mul_f32 v%d, v%d, v%d' % (e(1), e(1), za)), I('v_mul_f32 v%d, v%d, v%d' % (e(1) + 1, e(1) + 1, za)),
              I('v_mul_f32 v%d, v%d, v134' % (pw(1), pw(1))), I('v_mul_f32 v%d, v%d, v134' % (pw(1) + 1, pw(1) + 1))]
        return o
    a.run([I('v_lshlrev_b32 v%d, 16, v%d' % (RAW + 6, RAW + 6)),
           I('v_mul_f32 v%d, 0x3fb8aa3b, v%d' % (RAW + 6, RAW + 6)),
           I('v_exp_f32 v%d, v%d' % (RAW + 6, RAW + 6)),
           I('s_mov_b32 s52, 0'), I('s_mov_b32 vcc_lo, 1'),
           I('v_cvt_pk_bf16_f32 v%d, 0, v%d' % (dt, RAW + 6)),
           I('v_mul_f32 v%d, 0x3fb8aa3b, v%d' % (c12, dt)),
           I('v_mul_f32 v%d, 0.15915494, v%d' % (c12 + 1, dt))])
    a.run(setup(True))
    a.run([I('v_lshlrev_b32 v%d, 16, v%d' % (RAW + 7, RAW + 7)), I('v_cndmask_b32 v%d, 0, v%d, vcc' % (RAW + 7, RAW + 7))])
    if opt('kprio', 2) >= 2: a.add('s_setprio 1')
    if opt('kbar', 0): a.add('s_barrier')
    a.run(stamp(11))
    a.run([WAIT(lg=0), 'L_kgen:'])
    a.vm = []
    GL = Grp(0); GL.wc = 0
    cvr = Ring(list(range(CV, CV + 8)) + list(range(52, 60)))
    def put(v, row):
        t = cvr.pop()
        return [I('v_cvt_pk_bf16_f32 v%d, v%d, v%d' % (t, v, v + 1)), I('ds_write_addtid_b32 v%d offset:%d' % (t, row * RS))]
    def rdt(ti, row):
        return [I('ds_read_b128 %s, v%d offset:%d' % (vr(FR + 16 * s_ + 4 * ti, 4), vK1 if ti == 0 else vK, row * RS + 64 * s_)) for s_ in range(4)]
    y0 = [I('v_pk_mul_f32 %s, %s, %s op_sel_hi:[0,1] neg_hi:[0,1]' % (vr(y(0), 2), vr(cc, 2), vr(bb, 2))),
          I('v_pk_fma_f32 %s, %s, %s, %s op_sel:[1,1,0] op_sel_hi:[1,0,1] neg_lo:[1,0,0] neg_hi:[1,0,0]' % (vr(y(0), 2), vr(cc, 2), vr(bb, 2), vr(y(0), 2)))]
    first = zipper(pcmul(e(2), e(1), e(1)) + pcmul(e(4), e(2), e(2)) + pcmul(e(8), e(4), e(4)),
                   y0 + pcmul(pw(2), pw(1), pw(1)))
    colj = [(pcmul(y(b), y(b - 1), e(8), conj=True) if b else [], y(b), C1 + b) for b in range(32)]
    J = lambda d, p_, q_, row: (pcmul(d, p_, q_), d, row)
    rowj = [([], e(1), R1 + 1), ([], e(2), R1 + 2), ([], e(4), R1 + 4), ([], pw(1), R1 + 8),
            J(e(3), e(2), e(1), R1 + 3), J(e(5), e(4), e(1), R1 + 5), J(e(6), e(4), e(2), R1 + 6), J(e(7), e(4), e(3), R1 + 7),
            J(x(0), pw(1), e(2), R1 + 9), J(x(1), pw(1), e(4), R1 + 10), J(x(2), pw(1), e(6), R1 + 11), J(x(3), pw(1), e(8), R1 + 12),
            J(x(4), pw(2), e(4), R2 + 0), J(x(6), pw(2), e(8), R2 + 2), J(x(5), x(4), pw(1), R2 + 1), J(x(7), x(6), pw(1), R2 + 3),
            J(x(8), x(4), x(4), R2 + 4), J(x(9), x(8), pw(1), R2 + 5), J(x(10), x(8), pw(2), R2 + 6), J(x(11), x(9), pw(2), R2 + 7)]
    jobs = zipper(colj[:24], rowj) + colj[24:]
    o = list(first)
    pend = []; wq = []; done = set()
    KB = opt('kb', 4)
    need = [(1, C1, range(C1, C1 + 16)), (0, R1, range(R1 + 1, R1 + 13)), (3, R2, range(R2, R2 + 8)), (2, C1 + 16, range(C1 + 16, C1 + 32))]
    def flush():
        r = [w for w, _ in wq]
        done.update(x_ for _, x_ in wq); wq.clear()
        for it in list(need):
            if all(z in done for z in it[2]):
                r += rdt(it[0], it[1]); need.remove(it)
        return r
    for (mul, v, row) in jobs:
        if mul: o += [mul[0]] + pend + [mul[1]]
        else: o += pend
        if len(wq) >= KB: o += flush()
        c_, w_ = put(v, row)
        pend = [c_]; wq.append((w_, row))
    o += pend + flush()
    assert not need
    GL.gc = 0
    blocks = [(opt('kp0', 40), PF(OPT.get('pf2', 'u0u1')), A_gather(GL, 0, 0)),
              (opt('kp1', 130), PF(OPT.get('pf3', 'k2v2')), A_gather(GL, 2, 1))]
    if opt('nokv', 0): blocks = []
    if opt('kg_now', 0): o = [z for z in o if z.kind != 'dsw']
    if opt('kg_nor', 0): o = [z for z in o if z.kind != 'dsr']
    prev = 0
    for bi, (cut, pa, pb) in enumerate(blocks):
        a.run(o[prev:cut]); prev = cut
        a.run([I('s_cmp_lg_u32 s52, 0'), I('s_cbranch_scc1 L_kg_b%d' % bi)])
        for z in pa: a.out.append('    ' + z.text)
        a.run([I('s_branch L_kg_j%d' % bi), 'L_kg_b%d:' % bi])
        a.run(pb)
        a.run(['L_kg_j%d:' % bi])
    a.run(o[prev:])
    def mms(init):
        mm = []
        for half in range(2):
            for s_ in range(4):
                f = FR + 16 * s_; z = init and s_ == 0
                g0, g1 = GA + 4 * half, GA + 8 + 4 * half
                mm += [MF(g0, f, f + 4 + 4 * half, None if z else g0), MF(g1, f + 4 + 4 * half, f + 12, None if z else g1)]
        return mm if not opt('kg_nom', 0) else []
    a.run([I('s_cmp_lg_u32 s52, 0'), I('s_cbranch_scc1 L_kg_end')])
    lg_ = list(a.lg); h_ = list(a.hist)
    o, left = interleave(mms(True), setup(False), rate=2)
    a.run(o + left)
    if opt('st12', 0) == 0: a.run(stamp(12))
    if opt('kprio', 2) == 1:
        a.run([I('s_cmp_eq_u32 s%d, 0' % sGrp), I('s_cbranch_scc1 L_kg_np'), I('s_setprio 1'), 'L_kg_np:'])
    if opt('kprio', 2) == 2:
        a.run([I('s_cmp_lg_u32 s%d, 0' % sGrp), I('s_cbranch_scc1 L_kg_np'), I('s_setprio 0'), 'L_kg_np:'])
    if opt('kprio', 2) == 3:
        a.run([I('s_setprio 0')])
    a.run([I('s_mov_b32 s52, 1'), I('s_branch L_kgen'), 'L_kg_end:'])
    a.lg = lg_; a.hist = h_
    if opt('st12', 0) == 1: a.run(stamp(12))
    GL.wc = 2
    zw = [I('ds_write_addtid_b32 v92 offset:%d' % z) for z in (0, 1024, 2256, 2528)]
    o, left = interleave(mms(False), PF(OPT.get('pf4', 'k3v3q0u2')) + adv(vRw, -1024) + A_sig(GL, 0, 0) + zw, rate=2)
    a.run(o + left)
    if opt('kprio', 2): a.add('s_setprio 0')
    a.run(stamp(3))
    Go, Gy = Grp(0), Grp(1)
    Go.gc = Go.wc = 2; Gy.gc = Gy.wc = 3
    def tbuild():
        C = 112
        o = [I('s_nop 4'), I('v_add_f32 v%d, v%d, v%d' % (GA, GA, RAW + 7))]
        o += [I('v_cvt_pk_bf16_f32 v%d, v%d, v%d' % (C + k, GA + 2 * k, GA + 2 * k + 1)) for k in range(8)]
        o += [I('v_cvt_pk_bf16_f32 v%d, v%d, v%d' % (C + 8 + ct, GA + 4 * ct + 1, GA + 4 * ct + 2)) for ct in range(2)]
        for ct in range(2):
            o += [I('ds_write_b64 v%d, %s offset:%d' % (vGa, vr(C + 2 * ct, 2), 256 * ct + 32)),
                  I('ds_write_b16 v%d, v%d offset:%d' % (vGa, C + 2 * ct, 256 * ct + A_KE1 + 30)),
                  I('ds_write_b32 v%d, v%d offset:%d' % (vGa, C + 8 + ct, 256 * ct + A_KE1 + 32)),
                  I('ds_write_b16_d16_hi v%d, v%d offset:%d' % (vGa, C + 2 * ct + 1, 256 * ct + A_KE1 + 36))]
        o += [I('ds_write_b64 v%d, %s offset:%d' % (vGe, vr(C + 4 + 2 * ct, 2), A_HA + 32 * ct)) for ct in range(2)]
        o += [I('v_readlane_b32 s50, v%d, 63' % (C + 3)), I('v_readlane_b32 s51, v%d, 51' % (C + 7))]
        o += rd2(T16, vA1b, 0)
        for r in RORD[:A_PRE]: o += tA_load(r)
        o += [I('s_pack_hh_b32_b16 s50, s50, s50'), I('s_pack_hh_b32_b16 s51, s51, s51')]
        o += [I('v_and_b32 v%d, s51, v%d' % (T32 + i, T32 + i)) for i in range(4)]
        o += [I('v_and_or_b32 v%d, v%d, s50, v%d' % (T16 + i, M16 + i, T16 + i)) for i in range(4)]
        return o
    a1_ = opt('a1', 1)
    if a1_:
        tb = tbuild()
        if opt('dbg', 0) == 3:
            k_ = [i for i, z in enumerate(tb) if z.mn.startswith('v_readlane')][0]
            a.run(tb[:k_]); a.run(stamp(1)); a.run(tb[k_:]); a.run(stamp(2)); a.run(A_sig(GL, 2, 1)); a.run(stamp(11))
        else:
            a.run(tb); a.run(A_sig(GL, 2, 1))
    else:
        h_ = list(a.hist); lg_ = list(a.lg)
        a.run([I('s_cmp_lg_u32 s%d, 0' % sGrp), I('s_cbranch_scc1 L_A_pj')])
        a.run(tbuild())
        a.run(['L_A_pj:'])
        a.run(A_sig(GL, 2, 1))
    Go.vm = list(a.vm); Gy.vm = list(a.vm)
    a.run([I('s_waitcnt lgkmcnt(0)'), I('s_barrier')]); a.lg = []
    a.run(stamp(4))
    def PF2(z, g):
        rs_ = sorted(set((vPU if t == P_U else vP) + Q for t, Q in PL(z)))
        return PF(z) + [I('v_add_u32 v%d, %s, v%d' % (r_, lit((16 if g == 0 else -16) * 2048 * (2 if opt('pfx', 0) else 1)), r_)) for r_ in rs_] + PF(z)
    def wb(h): return wb1('A', h) if str(h) in OPT.get('wbA', '') else []
    S = {
        0: lambda G: ([] if a1_ else tbuild()) + A_gather(G, 4, 0) + A_gather(G, 5, 1) + PF2(OPT.get('pf5', 'q1u3q2q3'), 1) + A_wset(G, 5) + A_sig(G, 4, 0) + A_sig(G, 5, 1),
        1: lambda G: A_gather(G, 6, 0) + A_gather(G, 7, 1) + [BARRIER()] + out_unit('A', G, 0, None) + out_unit('A', G, 1, None, OT=64) + A_wset(G, 7) + A_sig(G, 6, 0) + A_sig(G, 7, 1),
        2: lambda G: out_unit('A', G, 2, None) + out_unit('A', G, 3, None, OT=64),
        3: lambda G: [],
        4: lambda G: out_unit('A', G, 4, None) + wb(4),
        5: lambda G: out_unit('A', G, 5, None) + wb(5),
    }
    def final(Go, Gy):
        a.vm = []; a.hist = []
        a.run(out_unit('A', Go, 6, None, OT=64))
    pingpong(a, 'A', Go, Gy, S, final, [[0], [2], [3]])
    a.run(stamp_out()); a.run(probe_end('A'))
    a.add('s_endpgm')

def main():
    hdr = open('cdna_kernels/%s.s.ref' % NAME).read().split('; Override launch')[0]
    a = Asm()
    a.raw(hdr.rstrip())
    a.raw("""; Written with my own generator script (gen/gen18.py + gen/asmlib.py: hand-designed schedule, automatic s_waitcnt / s_nop).
;
; Long causal convolution = Toeplitz blocks on v_mfma_f32_16x16x32_bf16, fp32 accumulation, 8 output tiles of 256.
; side blocks (S: gathers, kv, output transposition through LDS, stores).
;    applied to box-filtered signals (polyphase form).  A workgroups also pull later input rows into L2.
; B: the 4-tap shift filter and the bf16->fp32 unpack of v run on the MFMA; kv is kept in two shifted LDS copies.""")
    a.raw('; @launch grid=(256,1,1) block=(512,1,1) lds=%d' % LDS_BYTES)
    a.raw('.amdgcn_target "amdgcn-amd-amdhsa--gfx950"\n.text\n.globl %s_kernel\n.p2align 8\n.type %s_kernel,@function\n%s_kernel:' % (NAME, NAME, NAME))
    if STAMP: a.run([I('s_memrealtime s[92:93]')])
    a.run(stamp(0))
    a.run([I('s_load_dwordx16 s[8:23], s[0:1], 0'), I('s_load_dwordx16 s[24:39], s[0:1], 64'),
           I('s_cmp_ge_u32 s2, 256'), I('s_cbranch_scc1 L_exit'),
           I('v_lshrrev_b32 v12, 6, v0'), I('v_and_b32 v%d, 63, v0' % vLane),
           I('s_bfe_u32 s%d, s2, 0x30003' % sSub),
           I('v_readfirstlane_b32 s%d, v12' % sW),
           ] + ([
           I('s_getpc_b64 s[40:41]'), 'L_pc:', I('s_and_b32 s42, s2, 0xf8'), I('s_add_u32 s42, s42, s%d' % sW), I('s_lshl_b32 s42, s42, 7'),
           I('s_min_u32 s42, s42, L_exit-L_pc'), I('s_add_u32 s40, s40, s42'), I('s_addc_u32 s41, s41, 0'),
           I('v_mov_b32 v14, s40'), I('v_mov_b32 v15, s41'), pf('global_load_dword v62, v[14:15], off')] if opt('cpf', 1) else []) + [
           I('s_lshl_b32 s%d, s2, 2' % sT0), I('s_lshr_b32 s%d, 0x%s, s%d' % (sT0, OPT.get('xmap', '76043215'), sT0)),
           I('s_and_b32 s%d, s%d, 7' % (sT0, sT0)), I('s_lshl_b32 s%d, s%d, %d' % (sT0, sT0, 6 if opt('cmap', 0) else 7)),
           I('s_bfe_u32 s%d, s2, 0x1000%d' % (sT1, 13 - opt('tbit', 6))), I('s_lshl_b32 s%d, s%d, %d' % (sT1, sT1, 9 if opt('cmap', 0) else 6)),
           I('s_add_u32 s%d, s%d, s%d' % (sCh0, sT0, sT1)), I('s_lshl_b32 s%d, s%d, 3' % (sT0, sSub)), I('s_add_u32 s%d, s%d, s%d' % (sCh0, sCh0, sT0)),
           I('s_add_u32 s3, s%d, s%d' % (sCh0, sW)),
           I('s_lshr_b32 s%d, s%d, 2' % (sGrp, sW)),
           I('s_mov_b32 s%d, s%d' % (sWr, sW)),
           I('s_lshl_b32 s%d, s3, 1' % sT1), I('v_mov_b32 v17, s%d' % sT1),
           I('s_bitcmp1_b32 s2, %d' % opt('tbit', 6)), I('s_cbranch_scc%d L_A' % opt('tpol', 1))])
    sm0, smr0, h0 = a.smem, set(a.smem_regs), list(a.hist)
    early_B(a)
    vmB = list(a.vm)
    a.run([I('s_branch L_B'), 'L_A:'])
    a.vm, a.lg, a.hist = [], [], h0
    a.smem, a.smem_regs = sm0, smr0
    sm, smr = a.smem, set(a.smem_regs)
    gen_A(a)
    a.vm, a.lg, a.hist = vmB, [], []
    a.smem, a.smem_regs = False, set()
    a.raw('.p2align 6')
    gen_B(a)
    a.raw('L_exit:\n    s_endpgm')
    a.raw('''.section .rodata,"a"
.p2align 6
.amdhsa_kernel %s_kernel
  .amdhsa_next_free_vgpr 256
  .amdhsa_next_free_sgpr 102
  .amdhsa_accum_offset 256
  .amdhsa_group_segment_fixed_size 0
  .amdhsa_kernarg_size 144
  .amdhsa_user_sgpr_count 2
  .amdhsa_user_sgpr_kernarg_segment_ptr 1
  .amdhsa_system_sgpr_workgroup_id_x 1
.end_amdhsa_kernel''' % NAME)
    out = OPT.get('out', 'cdna_kernels/%s.s' % NAME)
    open(out, 'w').write(a.text())
    print(a.stats, file=sys.stderr)

if __name__ == '__main__':
    main()
```
